```python
import torch

def _softmax(x, axis=-1):
    return torch.softmax(x, dim=axis)
def _gelu(x):
    return torch.nn.functional.gelu(x, approximate="tanh")
def _silu(x):
    return torch.nn.functional.silu(x)
def _sigmoid(x):
    return torch.sigmoid(x)
def _layernorm(x, axis=-1, eps=1e-5):
    m = x.mean(dim=axis, keepdim=True)
    v = x.var(dim=axis, keepdim=True, unbiased=False)
    return (x - m) / torch.sqrt(v + eps)
def _scatter_add(tgt, idx, src, axis=0):
    return tgt.clone().index_add_(axis, idx, src)
def _segment_sum(src, seg, n):
    out = torch.zeros((n,) + src.shape[1:], dtype=src.dtype)
    return out.index_add_(0, seg, src)
def _pad(x, pw):
    flat = tuple(v for pair in reversed(pw) for v in pair)
    return torch.nn.functional.pad(x, flat)

kernel_name = 'parallel_sum__gqa_block_cached__glu_gated_geglu__decode'

def setup_inputs():

    _w = (lambda a: (lambda t: t.to(torch.bfloat16) if t.is_floating_point() else t)(torch.as_tensor(a)))
    def _A_setup():
        B, Sq, D = 8, 1, 1024
        Hq, Hkv, Sk, Dh = 32, 4, 8192, 128
        assert Hq % Hkv == 0, (Hq, Hkv)
        return {
            "x": _w((lambda *s: torch.randn(*s, dtype=torch.bfloat16) * 0.05)(B, Sq, D)),
            "k_cache": _w((lambda *s: torch.randn(*s, dtype=torch.bfloat16) * 1.6)(B, Hkv, Sk, Dh)),
            "v_cache": _w((lambda *s: torch.randn(*s, dtype=torch.bfloat16) * 0.8)(B, Hkv, Sk, Dh)),
            "wq": _w((lambda *s: torch.randn(*s, dtype=torch.bfloat16) * 1.6)(D, Hq * Dh) * (D ** -0.5)),
            "wo": _w((lambda *s: torch.randn(*s, dtype=torch.bfloat16) * 0.8)(Hq * Dh, D) * ((Hq * Dh) ** -0.5)),
        }
    _A_in = _A_setup()

    def _B_setup():
        B, S, Dm, Df = 8, 1, 1024, 3584
        return {
            "x": _w((lambda *s: torch.randn(*s, dtype=torch.bfloat16) * 0.05)(B, S, Dm)),
            "w_gate": _w((lambda *s: torch.randn(*s, dtype=torch.bfloat16) * 0.4)(Dm, Df) * (Dm ** -0.5)),
            "w_up": _w((lambda *s: torch.randn(*s, dtype=torch.bfloat16) * 0.4)(Dm, Df) * (Dm ** -0.5)),
            "w_down": _w((lambda *s: torch.randn(*s, dtype=torch.bfloat16) * 0.4)(Df, Dm) * (Df ** -0.5)),
        }
    _B_in = _B_setup()

    return {
        "A_x": _A_in["x"],
        "A_k_cache": _A_in["k_cache"],
        "A_v_cache": _A_in["v_cache"],
        "A_wq": _A_in["wq"],
        "A_wo": _A_in["wo"],
        "B_x": _B_in["x"],
        "B_w_gate": _B_in["w_gate"],
        "B_w_up": _B_in["w_up"],
        "B_w_down": _B_in["w_down"],
    }

def reference(A_x, A_k_cache, A_v_cache, A_wq, A_wo, B_x, B_w_gate, B_w_up, B_w_down):
    def _A_ref(x, k_cache, v_cache, wq, wo):
        B, Sq, D = x.shape
        Hq, Dh = 32, 128
        Hkv = k_cache.shape[1]
        rep = Hq // Hkv
        q = (lambda x, *d: x.permute(*d))((x @ wq).reshape(B, Sq, Hq, Dh), 0, 2, 1, 3)
        k = (lambda x, n, axis: torch.repeat_interleave(x, n, dim=axis))(k_cache, rep, axis=1)
        v = (lambda x, n, axis: torch.repeat_interleave(x, n, dim=axis))(v_cache, rep, axis=1)
        scores = torch.einsum("bhqd,bhkd->bhqk", q, k) * (Dh ** -0.5)
        p = _softmax(scores, axis=-1)
        o = torch.einsum("bhqk,bhkd->bhqd", p, v)
        return (lambda x, *d: x.permute(*d))(o, 0, 2, 1, 3).reshape(B, Sq, Hq * Dh) @ wo

    def _B_ref(x, w_gate, w_up, w_down):
        g = torch.einsum("bsd,df->bsf", x, w_gate)
        u = torch.einsum("bsd,df->bsf", x, w_up)
        h = _gelu(g) * u
        return torch.einsum("bsf,fd->bsd", h, w_down)

    x = A_x
    xn = _layernorm(x, axis=-1)
    return x + _A_ref(xn, A_k_cache, A_v_cache, A_wq, A_wo) + _B_ref(xn, B_w_gate, B_w_up, B_w_down)
```

```python
import sys

NAME = "parallel_sum__gqa_block_cached__glu_gated_geglu__decode_kernel"

WS_Q, WS_G, WS_U, WS_ST, WS_TK, WS_OP, WS_FP, WS_DBG = 0x0, 0x10000, 0x20000, 0x30000, 0x40000, 0x100000, 0x200000, 0x400000
WS_SIZE = 0x10000000
L_FLAG = 0x0
F_XN, F_P1, F_Q, F_O = 0, 4, 8, 12
L_XN, XN_PITCH = 0x100, 2080
L_P1 = 0x4200
L_Q, Q_PITCH = 0x8400, 288
L_ST = 0x8E00
L_O, O_SLAB, O_PITCH = 0x9000, 8 * 528, 528
LDS_BYTES = L_O + 8 * O_SLAB
SPIN_MAX = 20000

LOG2E = 0x3FB8AA3B
SCALE = 0x3DB504F3


class Asm:
    def __init__(self):
        self.L = []
        self.uid = 0
    def __call__(self, s):
        self.L.append("    " + s)
    def label(self, s):
        self.L.append(s + ":")
    def new(self, p="L"):
        self.uid += 1
        return f"{p}_{self.uid}"
    def c(self, s):
        self.L.append("    ; " + s)


def vr(a, n=1):
    return f"v{a}" if n == 1 else f"v[{a}:{a+n-1}]"
def sr(a, n=1):
    return f"s{a}" if n == 1 else f"s[{a}:{a+n-1}]"


def gen(opt):
    A = Asm()
    stamps = opt.get("stamps", False)

    def stamp(idx):
        if not stamps:
            return
        A("s_memrealtime s[90:91]")
        A("s_waitcnt lgkmcnt(0)")
        A(f"v_writelane_b32 v9, s90, {idx}")

    def stamp_flush():
        if not stamps:
            return
        A("s_lshl_b32 s92, s2, 4"); A("s_add_u32 s92, s92, s3"); A("s_lshl_b32 s92, s92, 6")
        A(f"s_add_u32 s92, s92, {WS_DBG}")
        A("s_mov_b64 exec, 0xffff")
        A("v_lshlrev_b32 v8, 2, v0")
        A("buffer_store_dword v9, v8, s[36:39], s92 offen")
        A("s_mov_b64 exec, -1")

    def srd(d, lo, hi, size):
        A(f"s_mov_b32 s{d}, {lo}"); A(f"s_mov_b32 s{d+1}, {hi}")
        A(f"s_mov_b32 s{d+2}, {size}"); A(f"s_mov_b32 s{d+3}, 0x00020000")

    def lds_wait(flag, count, vt, va):
        l = A.new("Llw"); d = A.new("Llwd")
        A.label(l)
        A(f"ds_read_b32 {vr(vt)}, {vr(va)} offset:{L_FLAG+flag}")
        A("s_waitcnt lgkmcnt(0)")
        A(f"v_readfirstlane_b32 s60, {vr(vt)}")
        A("s_nop 3")
        A(f"s_cmp_ge_u32 s60, {count}")
        A(f"s_cbranch_scc1 {d}")
        A("s_sleep 1")
        A(f"s_branch {l}")
        A.label(d)

    def lds_signal(flag, vt, va):
        A("s_waitcnt lgkmcnt(0)")
        A("s_mov_b64 exec, 1")
        A(f"v_mov_b32 {vr(vt)}, 1")
        A(f"ds_add_u32 {vr(va)}, {vr(vt)} offset:{L_FLAG+flag}")
        A("s_mov_b64 exec, -1")

    def xrow_reduce(op, v, t0, t1):
        for sw in ("v_permlane16_swap_b32", "v_permlane32_swap_b32"):
            A(f"v_mov_b32 {vr(t0)}, {vr(v)}")
            A(f"v_mov_b32 {vr(t1)}, {vr(v)}")
            A("s_nop 1")
            A(f"{sw} {vr(t0)}, {vr(t1)}")
            A("s_nop 1")
            A(f"{op} {vr(v)}, {vr(t0)}, {vr(t1)}")

    def row_reduce_add(vs):
        for ctl in ("quad_perm:[1,0,3,2]", "quad_perm:[2,3,0,1]", "row_half_mirror", "row_mirror"):
            A("s_nop 1")
            for v in vs:
                A(f"v_add_f32_dpp {vr(v)}, {vr(v)}, {vr(v)} {ctl} row_mask:0xf bank_mask:0xf")

    def bf16r(v, t):
        A(f"v_cvt_pk_bf16_f32 {vr(t)}, {vr(v)}, {vr(v)}")
        A(f"v_lshlrev_b32 {vr(v)}, 16, {vr(t)}")

    def sentinel_pending(regs, vt):
        A(f"v_max3_u32 {vr(vt)}, {vr(regs[0])}, {vr(regs[1])}, {vr(regs[2])}")
        rest = regs[3:]
        while len(rest) >= 2:
            A(f"v_max3_u32 {vr(vt)}, {vr(vt)}, {vr(rest[0])}, {vr(rest[1])}")
            rest = rest[2:]
        if rest:
            A(f"v_max_u32 {vr(vt)}, {vr(vt)}, {vr(rest[0])}")
        A(f"v_cmp_eq_u32 vcc, -1, {vr(vt)}")

    def poll_loop(loads, regs, vt, mask="-1"):
        l = A.new("Lpoll"); d = A.new("Lpolld")
        A(f"s_mov_b64 exec, {mask}")
        A("s_mov_b32 s61, 0")
        A.label(l)
        loads()
        A("s_waitcnt vmcnt(0)")
        sentinel_pending(regs, vt)
        A("s_add_u32 s61, s61, 1")
        A(f"s_cmp_ge_u32 s61, s62")
        A(f"s_cbranch_scc1 {d}")
        A("s_and_b64 exec, exec, vcc")
        A(f"s_cbranch_scc1 {l}")
        A.label(d)
        A("s_mov_b64 exec, -1")

    H = []
    H.append(f"; @launch grid=(256,1,1) block=(768,1,1) lds={LDS_BYTES}")
    H.append('.amdgcn_target "amdgcn-amd-amdhsa--gfx950"')
    H.append(".text"); H.append(f".globl {NAME}"); H.append(".p2align 8"); H.append(f".type {NAME},@function")
    H.append(f"{NAME}:")

    A("s_cmp_ge_u32 s2, 256")
    A("s_cbranch_scc1 L_end")
    A("s_load_dwordx16 s[4:19], s[0:1], 0")
    A("s_load_dwordx8 s[20:27], s[0:1], 64")
    A("v_lshrrev_b32 v1, 6, v0")
    A("v_and_b32 v0, 63, v0")
    A("v_mov_b32 v9, 0")
    A("v_readfirstlane_b32 s3, v1")
    A("v_lshlrev_b32 v3, 2, v0")
    A("s_lshr_b32 s56, s2, 3")
    A("s_and_b32 s57, s2, 7")
    A(f"s_mov_b32 s62, {SPIN_MAX}")
    A("s_mov_b32 s58, 0x05040100")
    A("s_mov_b32 s59, 0x07060302")
    A("s_cmp_lg_u32 s3, 0")
    A("s_cbranch_scc1 L_noz")
    A("ds_write_b32 v3, v9")
    A.label("L_noz")
    A("s_waitcnt lgkmcnt(0)")
    srd(36, "s26", "s27", WS_SIZE)
    stamp(0)
    A("s_cmp_lt_u32 s3, 4")
    A("s_cbranch_scc1 L_G")

    vK, vV, vM, vL = 1, 2, 3, 4
    T = [5, 6, 7, 8, 20, 21, 22, 23]
    S, P, VOP, Q, O, BUF = 10, 14, 16, 24, 40, 72
    NB = 3
    A.c("---------------- attention waves")
    A("s_lshl_b32 s63, s56, 21")
    A("s_add_u32 s28, s6, s63"); A("s_addc_u32 s29, s7, 0"); A("s_mov_b32 s30, 0x200000"); A("s_mov_b32 s31, 0x00020000")
    A("s_add_u32 s32, s8, s63"); A("s_addc_u32 s33, s9, 0"); A("s_mov_b32 s34, 0x200000"); A("s_mov_b32 s35, 0x00020000")
    A("v_and_b32 v5, 15, v0"); A("v_lshrrev_b32 v6, 4, v0")
    A(f"v_lshlrev_b32 {vr(vK)}, 8, v5"); A(f"v_lshl_add_u32 {vr(vK)}, v6, 4, {vr(vK)}")
    A(f"v_lshlrev_b32 {vr(vV)}, 10, v6"); A(f"v_lshl_add_u32 {vr(vV)}, v5, 4, {vr(vV)}")
    A("s_sub_u32 s64, s3, 4")
    if opt.get("interleave", True):
        A("s_lshl_b32 s65, s57, 6"); A("s_add_u32 s65, s65, s64"); A("s_lshl_b32 s65, s65, 12")
        ustep = 8 * 4096
    else:
        A("s_lshl_b32 s65, s57, 3"); A("s_add_u32 s65, s65, s64"); A("s_lshl_b32 s65, s65, 15")
        ustep = 4096
    A("s_mov_b32 s66, 0")
    A("s_mov_b32 s67, 0")

    def a_issue(b):
        A("s_cmp_lt_u32 s66, 8")
        A("s_cselect_b32 s68, s65, 0x7ff00000")
        for j in range(4):
            A(f"buffer_load_dwordx4 {vr(BUF+32*b+4*j,4)}, {vr(vK)}, s[28:31], s68 offen offset:{64*j} nt")
        for j in range(4):
            A(f"buffer_load_dwordx4 {vr(BUF+32*b+16+4*j,4)}, {vr(vV)}, s[32:35], s68 offen offset:{256*j} nt")
        A(f"s_add_u32 s65, s65, {ustep}")
        A("s_add_u32 s66, s66, 1")

    a_issue(0)
    A("s_barrier")
    a_issue(1); a_issue(2)
    for i in range(32):
        A(f"v_mov_b32 {vr(O+i)}, 0")
    A(f"v_mov_b32 {vr(vM)}, 0xff800000")
    A(f"v_mov_b32 {vr(vL)}, 0")
    A("v_mov_b32 v7, 0")
    stamp(1)
    lds_wait(F_Q, 1, 8, 7)
    stamp(2)
    A("v_and_b32 v7, 7, v0"); A(f"v_mul_u32_u24 v7, {Q_PITCH}, v7"); A("v_lshl_add_u32 v7, v6, 4, v7")
    for j in range(4):
        A(f"ds_read_b128 {vr(Q+4*j,4)}, v7 offset:{L_Q+64*j}")
    A(f"s_mov_b32 s69, 0x{LOG2E:x}")
    A(f"s_mov_b32 s70, 0x{SCALE:x}")
    A("s_waitcnt lgkmcnt(0)")
    A.label("L_Aloop")
    for b in range(NB):
        kb = BUF + 32 * b; vb = kb + 16
        A(f"s_waitcnt vmcnt({8*NB-4})")
        A(f"v_mfma_f32_16x16x32_bf16 {vr(S,4)}, {vr(kb,4)}, {vr(Q,4)}, 0")
        for j in range(1, 4):
            A(f"v_mfma_f32_16x16x32_bf16 {vr(S,4)}, {vr(kb+4*j,4)}, {vr(Q+4*j,4)}, {vr(S,4)}")
        A("s_nop 7")
        t0, t1, t2, t3 = T[0], T[1], T[2], T[3]
        for rnd in range(2):
            A(f"v_cvt_pk_bf16_f32 {vr(t0)}, {vr(S)}, {vr(S+1)}")
            A(f"v_cvt_pk_bf16_f32 {vr(t1)}, {vr(S+2)}, {vr(S+3)}")
            A(f"v_lshlrev_b32 {vr(S)}, 16, {vr(t0)}")
            A(f"v_and_b32 {vr(S+1)}, 0xffff0000, {vr(t0)}")
            A(f"v_lshlrev_b32 {vr(S+2)}, 16, {vr(t1)}")
            A(f"v_and_b32 {vr(S+3)}, 0xffff0000, {vr(t1)}")
            if rnd == 0:
                for r in range(4):
                    A(f"v_mul_f32 {vr(S+r)}, s70, {vr(S+r)}")
        A(f"v_max3_f32 {vr(t2)}, {vr(S)}, {vr(S+1)}, {vr(S+2)}")
        A(f"v_max3_f32 {vr(t2)}, {vr(t2)}, {vr(S+3)}, {vr(vM)}")
        xrow_reduce("v_max_f32", t2, t0, t1)
        A(f"v_sub_f32 {vr(t3)}, {vr(vM)}, {vr(t2)}")
        A(f"v_mul_f32 {vr(t3)}, s69, {vr(t3)}")
        A(f"v_exp_f32 {vr(t3)}, {vr(t3)}")
        A(f"v_mov_b32 {vr(vM)}, {vr(t2)}")
        A(f"v_mul_f32 {vr(t2)}, s69, {vr(t2)}")
        for r in range(4):
            A(f"v_fma_f32 {vr(S+r)}, {vr(S+r)}, s69, -{vr(t2)}")
        for r in range(4):
            A(f"v_exp_f32 {vr(S+r)}, {vr(S+r)}")
        A(f"v_mul_f32 {vr(vL)}, {vr(vL)}, {vr(t3)}")
        A(f"v_add_f32 {vr(t0)}, {vr(S)}, {vr(S+1)}")
        A(f"v_add_f32 {vr(t1)}, {vr(S+2)}, {vr(S+3)}")
        A(f"v_cvt_pk_bf16_f32 {vr(P)}, {vr(S)}, {vr(S+1)}")
        A(f"v_cvt_pk_bf16_f32 {vr(P+1)}, {vr(S+2)}, {vr(S+3)}")
        A(f"v_add_f32 {vr(vL)}, {vr(vL)}, {vr(t0)}")
        A(f"v_add_f32 {vr(vL)}, {vr(vL)}, {vr(t1)}")
        sk = A.new("Lnors")
        A(f"v_cmp_neq_f32 vcc, 1.0, {vr(t3)}")
        A("s_cbranch_vccz " + sk)
        for i in range(32):
            A(f"v_mul_f32 {vr(O+i)}, {vr(O+i)}, {vr(t3)}")
        A.label(sk)
        A(f"s_waitcnt vmcnt({8*NB-8})")
        for j in range(8):
            op = VOP + 2 * (j & 1)
            sel = "s58" if (j & 1) == 0 else "s59"
            dw = j >> 1
            A(f"v_perm_b32 {vr(op)}, {vr(vb+4+dw)}, {vr(vb+dw)}, {sel}")
            A(f"v_perm_b32 {vr(op+1)}, {vr(vb+12+dw)}, {vr(vb+8+dw)}, {sel}")
            A("s_nop 1")
            A(f"v_mfma_f32_16x16x16_bf16 {vr(O+4*j,4)}, {vr(op,2)}, {vr(P,2)}, {vr(O+4*j,4)}")
        a_issue(b)
        A("s_add_u32 s67, s67, 1")
        A("s_cmp_ge_u32 s67, 8")
        A("s_cbranch_scc1 L_Adone")
    A("s_branch L_Aloop")
    A.label("L_Adone")
    stamp(3)
    xrow_reduce("v_add_f32", vL, T[0], T[1])
    A("v_and_b32 v5, 15, v0"); A("v_lshrrev_b32 v6, 4, v0")
    A(f"v_mul_u32_u24 v7, {O_PITCH}, v5"); A("v_lshl_add_u32 v7, v6, 7, v7")
    A(f"s_mul_i32 s60, s64, {O_SLAB}")
    A("v_add_u32 v7, s60, v7")
    A("s_lshl_b32 s60, s64, 3")
    A("v_lshlrev_b32 v8, 6, v5"); A("v_add_u32 v8, s60, v8")
    A("v_cmp_gt_u32 vcc, 8, v5")
    A("s_and_b64 exec, exec, vcc")
    for j in range(8):
        A(f"ds_write_b128 v7, {vr(O+4*j,4)} offset:{L_O+16*j}")
    A(f"v_mov_b32 {vr(S)}, {vr(vM)}"); A(f"v_mov_b32 {vr(S+1)}, {vr(vL)}")
    A(f"ds_write_b64 v8, {vr(S,2)} offset:{L_ST}")
    A("s_mov_b64 exec, -1")
    A("v_mov_b32 v7, 0")
    lds_signal(F_O, 8, 7)
    A("s_cmp_ge_u32 s64, 4")
    A("s_cbranch_scc1 L_Aexit")
    lds_wait(F_O, 8, 8, 7)
    A("v_lshrrev_b32 v5, 5, v0"); A("s_lshl_b32 s60, s64, 1"); A("v_add_u32 v5, s60, v5")
    A("v_and_b32 v6, 31, v0")
    A(f"v_mul_u32_u24 v7, {O_PITCH}, v5"); A("v_lshl_add_u32 v7, v6, 4, v7")
    A("v_lshlrev_b32 v8, 6, v5")
    for i in range(4):
        A(f"ds_read_b128 {vr(Q+4*i,4)}, v8 offset:{L_ST+16*i}")
    A(f"v_add_u32 v7, {L_O}, v7")
    for a in range(8):
        A(f"ds_read_b128 {vr(BUF+4*a,4)}, v7 offset:{O_SLAB*a}")
    A("s_waitcnt lgkmcnt(8)")
    A(f"v_max3_f32 v10, {vr(Q)}, {vr(Q+2)}, {vr(Q+4)}")
    A(f"v_max3_f32 v10, v10, {vr(Q+6)}, {vr(Q+8)}")
    A(f"v_max3_f32 v10, v10, {vr(Q+10)}, {vr(Q+12)}")
    A(f"v_max_f32 v10, v10, {vr(Q+14)}")
    for a in range(8):
        A(f"v_sub_f32 {vr(Q+2*a)}, {vr(Q+2*a)}, v10")
    for a in range(8):
        A(f"v_mul_f32 {vr(Q+2*a)}, s69, {vr(Q+2*a)}")
    for a in range(8):
        A(f"v_exp_f32 {vr(Q+2*a)}, {vr(Q+2*a)}")
    A("s_nop 0")
    A(f"v_mul_f32 v11, {vr(Q)}, {vr(Q+1)}")
    for a in range(1, 8):
        A(f"v_fmac_f32 v11, {vr(Q+2*a)}, {vr(Q+2*a+1)}")
    A("s_waitcnt lgkmcnt(0)")
    for r in range(4):
        A(f"v_mul_f32 {vr(O+r)}, {vr(Q)}, {vr(BUF+r)}")
    for a in range(1, 8):
        for r in range(4):
            A(f"v_fmac_f32 {vr(O+r)}, {vr(Q+2*a)}, {vr(BUF+4*a+r)}")
    for r in range(4):
        A(f"v_min_u32 {vr(O+r)}, -2, {vr(O+r)}")
    A("v_min_u32 v10, -2, v10"); A("v_min_u32 v11, -2, v11")
    A("v_lshlrev_b32 v7, 9, v5"); A("v_lshl_add_u32 v7, v6, 4, v7")
    A("s_lshl_b32 s60, s2, 12"); A(f"s_add_u32 s60, s60, {WS_OP}")
    A(f"buffer_store_dwordx4 {vr(O,4)}, v7, s[36:39], s60 offen sc1")
    A("s_lshl_b32 s60, s56, 9"); A("s_lshl_b32 s61, s57, 3"); A("s_add_u32 s60, s60, s61"); A(f"s_add_u32 s60, s60, {WS_ST}")
    A("v_cmp_eq_u32 vcc, 0, v6")
    A("s_and_b64 exec, exec, vcc")
    A("buffer_store_dwordx2 v[10:11], v8, s[36:39], s60 offen sc1")
    A("s_mov_b64 exec, -1")
    A.label("L_Aexit")
    stamp(4)
    stamp_flush()
    A("s_endpgm")

    A.label("L_G")
    A.c("---------------- GEMV / control waves")
    X, W, ACC, XOP, OPT = 10, 40, 10, 26, 30
    srd(32, "s4", "s5", 16384)
    A("v_lshlrev_b32 v1, 5, v0")
    A("s_lshl_b32 s60, s3, 12")
    for r in range(2):
        for hlf in range(2):
            A(f"buffer_load_dwordx4 {vr(X+8*r+4*hlf,4)}, v1, s[32:35], s60 offen offset:{2048*r+16*hlf}")
    A("s_add_u32 s63, s2, s56"); A("s_and_b32 s63, s63, 7")
    A("s_mul_i32 s64, s56, 5"); A("s_add_u32 s64, s64, s63")
    A("s_add_u32 s65, s56, 160")
    A("s_cmp_lt_u32 s63, 5"); A("s_cselect_b32 s64, s64, s65")
    A("s_cmp_gt_u32 s63, 5"); A("s_cselect_b32 s64, 255, s64")
    A("s_cmp_lt_u32 s64, 120")
    A("s_cselect_b32 s28, s16, s18"); A("s_cselect_b32 s29, s17, s19")
    A(f"s_mov_b32 s66, {WS_U}"); A(f"s_cselect_b32 s66, {WS_G}, s66")
    A("s_cselect_b32 s65, 64, 120")
    A("s_cmp_lt_u32 s64, 64")
    A("s_cselect_b32 s28, s10, s28"); A("s_cselect_b32 s29, s11, s29")
    A(f"s_cselect_b32 s66, {WS_Q}, s66")
    A("s_cselect_b32 s65, 0, s65")
    A("s_mov_b32 s67, 7168"); A("s_cselect_b32 s67, 8192, s67")
    A("s_mov_b32 s30, 0x700000"); A("s_cselect_b32 s30, 0x800000, s30"); A("s_mov_b32 s31, 0x00020000")
    A("s_sub_u32 s65, s64, s65"); A("s_lshl_b32 s65, s65, 7")
    A("s_add_u32 s66, s66, s65")
    A("s_barrier")
    A("s_cmp_lg_u32 s3, 1"); A("s_cbranch_scc1 L_noclr")
    for i in range(4):
        A(f"v_mov_b32 {vr(W+i)}, -1")
    A("v_lshlrev_b32 v2, 4, v0")
    A("s_lshl_b32 s60, s2, 12"); A(f"s_add_u32 s61, s60, {WS_OP}")
    for i in range(4):
        A(f"buffer_store_dwordx4 {vr(W,4)}, v2, s[36:39], s61 offen offset:{1024*i} sc1")
    A("s_lshl_b32 s61, s57, 5"); A("s_add_u32 s61, s61, s56"); A("s_lshl_b32 s61, s61, 12"); A(f"s_add_u32 s61, s61, {WS_FP}")
    for i in range(4):
        A(f"buffer_store_dwordx4 {vr(W,4)}, v2, s[36:39], s61 offen offset:{1024*i} sc1")
    A("s_lshl_b32 s60, s56, 9"); A("s_lshl_b32 s61, s57, 3"); A("s_add_u32 s60, s60, s61"); A(f"s_add_u32 s60, s60, {WS_ST}")
    A("v_lshlrev_b32 v2, 6, v0")
    A("s_mov_b64 exec, 0xff")
    A(f"buffer_store_dwordx2 {vr(W,2)}, v2, s[36:39], s60 offen sc1")
    A("s_mov_b64 exec, -1")
    A("s_cmp_ge_u32 s64, 176"); A("s_cbranch_scc1 L_clr2")
    A("v_lshrrev_b32 v2, 3, v0"); A("v_mul_lo_u32 v2, v2, s67"); A("v_and_b32 v3, 7, v0"); A("v_lshl_add_u32 v2, v3, 4, v2")
    A(f"buffer_store_dwordx4 {vr(W,4)}, v2, s[36:39], s66 offen sc1")
    A.label("L_clr2")
    A("s_waitcnt vmcnt(0)")
    A("s_and_b32 s60, s2, 3"); A("s_lshl_b32 s60, s60, 6")
    A("v_mov_b32 v2, s60"); A("v_mov_b32 v3, 1")
    A("s_mov_b64 exec, 1")
    A("global_atomic_add v2, v3, s[24:25]")
    A("s_mov_b64 exec, -1")
    A.label("L_noclr")
    A("v_and_b32 v5, 15, v0"); A("v_lshrrev_b32 v6, 4, v0")
    A("s_cmp_ge_u32 s64, 176"); A("s_cbranch_scc1 L_G_p1done")
    A("v_lshlrev_b32 v2, 3, v6"); A("v_mul_lo_u32 v2, v2, s67"); A("v_lshl_add_u32 v2, v5, 3, v2")
    A("s_lshl_b32 s60, s3, 8"); A("s_mul_i32 s60, s60, s67"); A("s_add_u32 s68, s60, s65")
    A("s_mul_i32 s69, s67, 24")

    def w_issue(kb):
        for i in range(8):
            A(f"buffer_load_dwordx2 {vr(W+16*kb+2*i,2)}, v2, s[28:31], s68 offen nt")
            A("s_add_u32 s68, s68, s67")
        A("s_add_u32 s68, s68, s69")
    for kb in range(4):
        w_issue(kb)
    stamp(1)
    A("s_waitcnt vmcnt(32)")
    F = W + 64
    for r in range(2):
        for i in range(8):
            A(f"v_lshlrev_b32 {vr(F+16*r+2*i)}, 16, {vr(X+8*r+i)}")
            A(f"v_and_b32 {vr(F+16*r+2*i+1)}, 0xffff0000, {vr(X+8*r+i)}")
    SM = [26, 27]; VA = [28, 29]
    for r in range(2):
        A(f"v_add_f32 {vr(SM[r])}, {vr(F+16*r)}, {vr(F+16*r+1)}")
        for i in range(2, 16):
            A(f"v_add_f32 {vr(SM[r])}, {vr(SM[r])}, {vr(F+16*r+i)}")
    row_reduce_add(SM)
    for r in range(2):
        xrow_reduce("v_add_f32", SM[r], 30, 31)
    for r in range(2):
        A(f"v_mul_f32 {vr(SM[r])}, 0x3a800000, {vr(SM[r])}")
    for r in range(2):
        A(f"v_mov_b32 {vr(VA[r])}, 0")
        for i in range(16):
            A(f"v_sub_f32 v30, {vr(F+16*r+i)}, {vr(SM[r])}")
            A(f"v_fmac_f32 {vr(VA[r])}, v30, v30")
    row_reduce_add(VA)
    for r in range(2):
        xrow_reduce("v_add_f32", VA[r], 30, 31)
    for r in range(2):
        A(f"v_mul_f32 {vr(VA[r])}, 0x3a800000, {vr(VA[r])}")
        bf16r(VA[r], 30)
        A(f"v_add_f32 {vr(VA[r])}, 0x3727c5ac, {vr(VA[r])}")
        bf16r(VA[r], 30)
        A(f"v_sqrt_f32 {vr(VA[r])}, {vr(VA[r])}")
        A("s_nop 0")
        bf16r(VA[r], 30)
        A(f"v_rcp_f32 {vr(VA[r])}, {vr(VA[r])}")
        bf16r(SM[r], 30)
    for r in range(2):
        for i in range(8):
            a, b2 = F + 16 * r + 2 * i, F + 16 * r + 2 * i + 1
            A(f"v_sub_f32 {vr(a)}, {vr(a)}, {vr(SM[r])}")
            A(f"v_sub_f32 {vr(b2)}, {vr(b2)}, {vr(SM[r])}")
            A(f"v_cvt_pk_bf16_f32 v30, {vr(a)}, {vr(b2)}")
            A(f"v_lshlrev_b32 {vr(a)}, 16, v30")
            A(f"v_and_b32 {vr(b2)}, 0xffff0000, v30")
            A(f"v_mul_f32 {vr(a)}, {vr(a)}, {vr(VA[r])}")
            A(f"v_mul_f32 {vr(b2)}, {vr(b2)}, {vr(VA[r])}")
            A(f"v_cvt_pk_bf16_f32 {vr(X+8*r+i)}, {vr(a)}, {vr(b2)}")
    A(f"s_mul_i32 s60, s3, {2*XN_PITCH}")
    A("v_add_u32 v3, s60, v1")
    for r in range(2):
        for hlf in range(2):
            A(f"ds_write_b128 v3, {vr(X+8*r+4*hlf,4)} offset:{L_XN+XN_PITCH*r+16*hlf}")
    A("v_mov_b32 v7, 0")
    lds_signal(F_XN, 8, 7)
    for kb in range(4, 8):
        w_issue(kb)
    stamp(2)
    lds_wait(F_XN, 4, 8, 7)
    A("v_and_b32 v3, 7, v0"); A(f"v_mul_u32_u24 v3, {XN_PITCH}, v3"); A("v_lshl_add_u32 v3, v6, 4, v3")
    A("s_lshl_b32 s60, s3, 9"); A("v_add_u32 v3, s60, v3")
    for i in range(16):
        A(f"v_mov_b32 {vr(ACC+i)}, 0")
    for kb in range(8):
        A(f"ds_read_b128 {vr(XOP,4)}, v3 offset:{L_XN+64*kb}")
        A(f"s_waitcnt vmcnt({8*(7-kb)}) lgkmcnt(0)")
        wb = W + 16 * kb
        for j in range(4):
            op = OPT + 4 * (j & 1)
            sel = "s58" if (j & 1) == 0 else "s59"
            dw = j >> 1
            for t in range(4):
                A(f"v_perm_b32 {vr(op+t)}, {vr(wb+4*t+2+dw)}, {vr(wb+4*t+dw)}, {sel}")
            A("s_nop 1")
            A(f"v_mfma_f32_16x16x32_bf16 {vr(ACC+4*j,4)}, {vr(op,4)}, {vr(XOP,4)}, {vr(ACC+4*j,4)}")
        A("s_nop 1")
    stamp(3)
    A("s_nop 7")
    A("v_mul_u32_u24 v3, 272, v5"); A("v_lshl_add_u32 v3, v6, 4, v3")
    A(f"s_mul_i32 s60, s3, {8*272}"); A("v_add_u32 v3, s60, v3")
    A("v_cmp_gt_u32 vcc, 8, v5"); A("s_and_b64 exec, exec, vcc")
    for j in range(4):
        A(f"ds_write_b128 v3, {vr(ACC+4*j,4)} offset:{L_P1+64*j}")
    A("s_mov_b64 exec, -1")
    lds_signal(F_P1, 8, 7)
    lds_wait(F_P1, 4, 8, 7)
    A("v_lshrrev_b32 v3, 5, v0"); A("s_lshl_b32 s60, s3, 1"); A("v_add_u32 v3, s60, v3")
    A("v_and_b32 v4, 31, v0")
    A("v_mul_u32_u24 v8, 272, v3")
    A("v_and_b32 v10, 1, v4"); A("v_lshl_add_u32 v8, v10, 7, v8")
    A("v_lshrrev_b32 v10, 1, v4"); A("v_lshl_add_u32 v8, v10, 2, v8")
    A(f"v_add_u32 v8, {L_P1}, v8")
    for w in range(4):
        if w:
            A(f"v_add_u32 v8, {8*272}, v8")
        A(f"ds_read2_b32 {vr(12+2*w,2)}, v8 offset0:0 offset1:16")
    A("s_waitcnt lgkmcnt(0)")
    for e in range(2):
        A(f"v_add_f32 {vr(12+e)}, {vr(12+e)}, {vr(14+e)}")
        A(f"v_add_f32 {vr(16+e)}, {vr(16+e)}, {vr(18+e)}")
        A(f"v_add_f32 {vr(12+e)}, {vr(12+e)}, {vr(16+e)}")
    A("v_cvt_pk_bf16_f32 v12, v12, v13")
    A("v_min_u32 v12, -2, v12")
    A("v_mul_lo_u32 v3, v3, s67"); A("v_lshl_add_u32 v3, v4, 2, v3")
    A("buffer_store_dword v12, v3, s[36:39], s66 offen sc1")
    stamp(4)
    A.label("L_G_p1done")
    A("v_mov_b32 v7, 0")
    A("s_cmp_lg_u32 s3, 0"); A("s_cbranch_scc1 L_G_noq")
    srd(52, "s24", "s25", 256)
    A("v_lshlrev_b32 v3, 2, v0")
    A("s_mov_b32 s61, 0")
    A("s_mov_b32 s72, 0x00010001"); A("s_mov_b32 s73, 0x00010001")
    A.label("L_cert")
    A("buffer_load_dword v10, v3, s[52:55], 0 offen sc1")
    A("s_waitcnt vmcnt(0)")
    A("v_cmp_le_u32 vcc, 64, v10")
    A("s_add_u32 s61, s61, 1")
    A("s_cmp_ge_u32 s61, s62"); A("s_cbranch_scc1 L_certd")
    A("s_and_b64 vcc, vcc, s[72:73]")
    A("s_cmp_eq_u64 vcc, s[72:73]")
    A("s_cbranch_scc1 L_certd")
    A("s_sleep 8")
    A("s_branch L_cert")
    A.label("L_certd")
    stamp(5)
    A("s_lshl_b32 s60, s56, 11")
    def qloads():
        A(f"buffer_load_dwordx4 v[10:13], v1, s[36:39], s60 offen offset:{WS_Q} sc1")
        A(f"buffer_load_dwordx4 v[14:17], v1, s[36:39], s60 offen offset:{WS_Q+16} sc1")
    poll_loop(qloads, list(range(10, 18)), 8)
    A("v_lshrrev_b32 v3, 3, v0"); A(f"v_mul_u32_u24 v3, {Q_PITCH}, v3"); A("v_and_b32 v4, 7, v0"); A("v_lshl_add_u32 v3, v4, 5, v3")
    A(f"ds_write_b128 v3, v[10:13] offset:{L_Q}")
    A(f"ds_write_b128 v3, v[14:17] offset:{L_Q+16}")
    lds_signal(F_Q, 8, 7)
    stamp(6)
    A.label("L_G_noq")
    WO, WD, WOP, OD, STT, ACC2 = 40, 72, 104, 72, 26, 136
    srd(40, "s12", "s13", 0x800000)
    srd(44, "s20", "s21", 0x700000)
    for i in range(32):
        A(f"v_mov_b32 {vr(WD+i)}, 0")
    A("v_lshlrev_b32 v2, 14, v6"); A("v_lshl_add_u32 v2, v5, 4, v2")
    A("s_mul_i32 s60, s56, 112"); A("s_lshl_b32 s61, s3, 5"); A("s_add_u32 s74, s60, s61")
    A("s_lshl_b32 s60, s74, 11"); A("s_lshl_b32 s61, s57, 8"); A("s_add_u32 s60, s60, s61")
    A("s_cmp_eq_u32 s3, 3")
    A("s_cselect_b32 s77, 0, -1"); A("s_mov_b32 s76, -1")
    A("s_mov_b64 exec, s[76:77]")
    for i in range(8):
        A(f"buffer_load_dwordx4 {vr(WD+4*i,4)}, v2, s[44:47], s60 offen offset:{2048*(i&1)} nt")
        if i & 1:
            A("s_add_u32 s60, s60, 4096")
    A("s_mov_b64 exec, -1")
    A("v_lshlrev_b32 v3, 12, v6"); A("v_lshl_add_u32 v3, v5, 4, v3")
    A("s_lshl_b32 s60, s56, 2"); A("s_add_u32 s60, s60, s3"); A("s_lshl_b32 s60, s60, 16"); A("s_add_u32 s60, s60, s61")
    for i4 in range(4):
        for hi in range(2):
            i = i4 + 4 * hi
            A(f"buffer_load_dwordx4 {vr(WO+4*i,4)}, v3, s[40:43], s60 offen offset:{2048*hi} nt")
        A("s_add_u32 s60, s60, 16384")
    A("s_and_b32 s78, s56, 7"); A("s_lshr_b32 s79, s56, 3")
    A("s_lshl_b32 s80, s78, 11"); A("s_lshl_b32 s60, s57, 8"); A("s_add_u32 s80, s80, s60"); A("s_lshl_b32 s60, s79, 6"); A("s_add_u32 s80, s80, s60")
    A("v_lshlrev_b32 v4, 1, v0")
    A("buffer_load_ushort v38, v4, s[32:35], s80 offen")
    lds_wait(F_Q, 1, 8, 7)
    A("v_and_b32 v2, 7, v0"); A("v_mul_u32_u24 v2, 7168, v2"); A("v_lshl_add_u32 v2, v6, 4, v2")
    A("s_lshl_b32 s60, s74, 1"); A(f"s_add_u32 s63, s60, {WS_U}"); A(f"s_add_u32 s60, s60, {WS_G}")
    for i in range(8):
        A(f"v_mov_b32 {vr(10+i)}, 0")
    def guloads():
        A("buffer_load_dwordx4 v[10:13], v2, s[36:39], s60 offen sc1")
        A("buffer_load_dwordx4 v[14:17], v2, s[36:39], s63 offen sc1")
    poll_loop(guloads, list(range(10, 18)), 8, "s[76:77]")
    stamp(7)
    A("s_mov_b32 s60, 0x3d372713")
    A("s_mov_b32 s61, 0xc0135761")
    HOPR = 34
    for i in range(4):
        g0, g1, u0, u1, z0, z1 = 18, 19, 20, 21, 22, 23
        A(f"v_lshlrev_b32 {vr(g0)}, 16, {vr(10+i)}"); A(f"v_and_b32 {vr(g1)}, 0xffff0000, {vr(10+i)}")
        A(f"v_lshlrev_b32 {vr(u0)}, 16, {vr(14+i)}"); A(f"v_and_b32 {vr(u1)}, 0xffff0000, {vr(14+i)}")
        for g, z in ((g0, z0), (g1, z1)):
            A(f"v_mul_f32 {vr(z)}, {vr(g)}, {vr(g)}")
            A(f"v_mul_f32 {vr(z)}, s60, {vr(z)}")
            A(f"v_fma_f32 {vr(z)}, {vr(z)}, {vr(g)}, {vr(g)}")
            A(f"v_mul_f32 {vr(z)}, s61, {vr(z)}")
            A(f"v_exp_f32 {vr(z)}, {vr(z)}")
            A("s_nop 0")
            A(f"v_add_f32 {vr(z)}, 1.0, {vr(z)}")
            A(f"v_rcp_f32 {vr(z)}, {vr(z)}")
            A("s_nop 0")
            A(f"v_mul_f32 {vr(g)}, {vr(g)}, {vr(z)}")
        A(f"v_cvt_pk_bf16_f32 {vr(z0)}, {vr(g0)}, {vr(g1)}")
        A(f"v_lshlrev_b32 {vr(g0)}, 16, {vr(z0)}"); A(f"v_and_b32 {vr(g1)}, 0xffff0000, {vr(z0)}")
        A(f"v_mul_f32 {vr(g0)}, {vr(g0)}, {vr(u0)}"); A(f"v_mul_f32 {vr(g1)}, {vr(g1)}, {vr(u1)}")
        A(f"v_cvt_pk_bf16_f32 {vr(HOPR+i)}, {vr(g0)}, {vr(g1)}")
    for j in range(8):
        op = 10 + 4 * (j & 1)
        sel = "s58" if (j & 1) == 0 else "s59"
        dw = j >> 1
        for t in range(4):
            A(f"v_perm_b32 {vr(op+t)}, {vr(WD+8*t+4+dw)}, {vr(WD+8*t+dw)}, {sel}")
        A("s_nop 1")
        A(f"v_mfma_f32_16x16x32_bf16 {vr(ACC2+4*j,4)}, {vr(op,4)}, {vr(HOPR,4)}, 0")
    for j in range(8):
        sel = "s58" if (j & 1) == 0 else "s59"
        dw = j >> 1
        for t in range(4):
            A(f"v_perm_b32 {vr(WOP+4*j+t)}, {vr(WO+8*t+4+dw)}, {vr(WO+8*t+dw)}, {sel}")
    A("v_and_b32 v2, 7, v0"); A("v_bfe_u32 v3, v0, 3, 1")
    A("v_lshlrev_b32 v4, 17, v2"); A("v_lshl_add_u32 v4, v3, 14, v4"); A("v_lshl_add_u32 v4, v6, 5, v4")
    A("s_lshl_b32 s60, s79, 15"); A("s_lshl_b32 s61, s78, 9"); A("s_add_u32 s60, s60, s61"); A("s_lshl_b32 s61, s3, 7"); A("s_add_u32 s60, s60, s61")
    A(f"s_add_u32 s81, s60, {WS_OP}")
    for s_ in range(1, 4):
        A(f"s_add_u32 s{81+s_}, s81, {4096*s_}")
    A("v_lshlrev_b32 v2, 11, v2"); A("v_lshl_add_u32 v2, v3, 5, v2")
    A("s_lshl_b32 s60, s79, 9"); A("s_lshl_b32 s61, s78, 6"); A("s_add_u32 s60, s60, s61"); A(f"s_add_u32 s85, s60, {WS_ST}")
    A(f"s_mov_b32 s69, 0x{LOG2E:x}")
    stamp(8)
    lds_wait(F_O, 8, 8, 7)
    stamp(9)
    def h1loads():
        A(f"buffer_load_dwordx4 {vr(STT,4)}, v2, s[36:39], s85 offen sc1")
        A(f"buffer_load_dwordx4 {vr(STT+4,4)}, v2, s[36:39], s85 offen offset:16 sc1")
        for s_ in range(4):
            A(f"buffer_load_dwordx4 {vr(OD+8*s_,4)}, v4, s[36:39], s{81+s_} offen sc1")
            A(f"buffer_load_dwordx4 {vr(OD+8*s_+4,4)}, v4, s[36:39], s{81+s_} offen offset:16 sc1")
    poll_loop(h1loads, list(range(STT, STT + 8)) + list(range(OD, OD + 32)), 8)
    stamp(10)
    ROR = "row_ror:8 row_mask:0xf bank_mask:0xf"
    A(f"v_max3_f32 v10, {vr(STT)}, {vr(STT+2)}, {vr(STT+4)}")
    A(f"v_max_f32 v10, v10, {vr(STT+6)}")
    A("s_nop 1")
    A(f"v_max_f32_dpp v10, v10, v10 {ROR}")
    for s_ in range(4):
        A(f"v_sub_f32 {vr(STT+2*s_)}, {vr(STT+2*s_)}, v10")
    for s_ in range(4):
        A(f"v_mul_f32 {vr(STT+2*s_)}, s69, {vr(STT+2*s_)}")
    for s_ in range(4):
        A(f"v_exp_f32 {vr(STT+2*s_)}, {vr(STT+2*s_)}")
    A("s_nop 0")
    A(f"v_mul_f32 v11, {vr(STT)}, {vr(STT+1)}")
    for s_ in range(1, 4):
        A(f"v_fmac_f32 v11, {vr(STT+2*s_)}, {vr(STT+2*s_+1)}")
    A("s_nop 1")
    A(f"v_add_f32_dpp v11, v11, v11 {ROR}")
    A("v_rcp_f32 v11, v11")
    for i in range(8):
        A(f"v_mul_f32 {vr(12+i)}, {vr(STT)}, {vr(OD+i)}")
    for s_ in range(1, 4):
        for i in range(8):
            A(f"v_fmac_f32 {vr(12+i)}, {vr(STT+2*s_)}, {vr(OD+8*s_+i)}")
    A("s_nop 1")
    for i in range(8):
        A(f"v_add_f32_dpp {vr(12+i)}, {vr(12+i)}, {vr(12+i)} {ROR}")
    for i in range(8):
        A(f"v_mul_f32 {vr(12+i)}, {vr(12+i)}, v11")
    for i in range(4):
        A(f"v_cvt_pk_bf16_f32 {vr(20+i)}, {vr(12+2*i)}, {vr(13+2*i)}")
    A("s_nop 1")
    for j in range(8):
        A(f"v_mfma_f32_16x16x32_bf16 {vr(ACC2+4*j,4)}, {vr(WOP+4*j,4)}, v[20:23], {vr(ACC2+4*j,4)}")
    A(f"v_mul_u32_u24 v3, {O_PITCH}, v5"); A("v_lshl_add_u32 v3, v6, 7, v3")
    A(f"s_mul_i32 s60, s3, {O_SLAB}"); A("v_add_u32 v3, s60, v3")
    A("v_cmp_gt_u32 vcc, 8, v5"); A("s_and_b64 exec, exec, vcc")
    A("s_nop 4")
    for j in range(8):
        A(f"ds_write_b128 v3, {vr(ACC2+4*j,4)} offset:{L_P1+16*j}")
    A("s_mov_b64 exec, -1")
    A("s_waitcnt lgkmcnt(0)")
    A("s_barrier")
    A("v_lshrrev_b32 v3, 5, v0"); A("s_lshl_b32 s60, s3, 1"); A("v_add_u32 v3, s60, v3")
    A("v_and_b32 v4, 31, v0")
    A(f"v_mul_u32_u24 v8, {O_PITCH}, v3"); A("v_lshl_add_u32 v8, v4, 4, v8")
    for w in range(4):
        A(f"ds_read_b128 {vr(12+4*w,4)}, v8 offset:{L_P1+O_SLAB*w}")
    A("v_lshlrev_b32 v3, 9, v3"); A("v_lshl_add_u32 v3, v4, 4, v3")
    A("s_lshl_b32 s61, s57, 5"); A("s_add_u32 s61, s61, s56"); A("s_lshl_b32 s61, s61, 12"); A(f"s_add_u32 s61, s61, {WS_FP}")
    A("s_waitcnt lgkmcnt(0)")
    for r in range(4):
        A(f"v_add_f32 {vr(12+r)}, {vr(12+r)}, {vr(16+r)}")
        A(f"v_add_f32 {vr(20+r)}, {vr(20+r)}, {vr(24+r)}")
    for r in range(4):
        A(f"v_add_f32 {vr(12+r)}, {vr(12+r)}, {vr(20+r)}")
    for r in range(4):
        A(f"v_min_u32 {vr(12+r)}, -2, {vr(12+r)}")
    A("buffer_store_dwordx4 v[12:15], v3, s[36:39], s61 offen sc1")
    stamp(11)
    A("s_cmp_lg_u32 s3, 0"); A("s_cbranch_scc1 L_Gexit")
    A("v_lshrrev_b32 v2, 3, v0"); A("v_and_b32 v3, 7, v0")
    A("v_lshlrev_b32 v4, 14, v2"); A("v_lshl_add_u32 v4, v3, 4, v4")
    A("s_lshl_b32 s60, s57, 17"); A("s_lshl_b32 s61, s78, 9"); A("s_add_u32 s60, s60, s61"); A("s_lshl_b32 s61, s79, 7"); A("s_add_u32 s60, s60, s61")
    A(f"s_add_u32 s81, s60, {WS_FP}")
    for s_ in range(1, 4):
        A(f"s_add_u32 s{81+s_}, s81, {4096*s_}")
    srd(48, "s22", "s23", 16384)
    def h2loads():
        for t in range(4):
            A(f"buffer_load_dwordx4 {vr(12+4*t,4)}, v4, s[36:39], s{81+t} offen sc1")
    poll_loop(h2loads, list(range(12, 28)), 8)
    stamp(12)
    for r in range(4):
        A(f"v_add_f32 {vr(12+r)}, {vr(12+r)}, {vr(16+r)}")
        A(f"v_add_f32 {vr(20+r)}, {vr(20+r)}, {vr(24+r)}")
    for r in range(4):
        A(f"v_add_f32 {vr(12+r)}, {vr(12+r)}, {vr(20+r)}")
    A("s_nop 1")
    for r in range(4):
        A(f"v_add_f32_dpp {vr(12+r)}, {vr(12+r)}, {vr(12+r)} {ROR}")
    for r in range(4):
        xrow_reduce("v_add_f32", 12 + r, 16, 17)
    for r in range(1, 4):
        A(f"v_cmp_eq_u32 vcc, {r}, v2")
        A("s_nop 1")
        A(f"v_cndmask_b32 v12, v12, {vr(12+r)}, vcc")
    A("v_lshlrev_b32 v38, 16, v38")
    A("v_add_f32 v12, v12, v38")
    A("v_cvt_pk_bf16_f32 v12, v12, v12")
    A("v_lshlrev_b32 v4, 1, v0")
    A("s_mov_b64 exec, 0xffffffff")
    A("buffer_store_short v12, v4, s[48:51], s80 offen")
    A("s_mov_b64 exec, -1")
    A.label("L_Gexit")
    stamp(13)
    stamp_flush()
    A.label("L_end")
    A("s_endpgm")

    Ft = ['.section .rodata,"a"', ".p2align 6", f".amdhsa_kernel {NAME}",
          "  .amdhsa_next_free_vgpr 168", "  .amdhsa_next_free_sgpr 96", "  .amdhsa_accum_offset 168",
          "  .amdhsa_group_segment_fixed_size 0", "  .amdhsa_kernarg_size 96", "  .amdhsa_user_sgpr_count 2",
          "  .amdhsa_user_sgpr_kernarg_segment_ptr 1", "  .amdhsa_system_sgpr_workgroup_id_x 1", ".end_amdhsa_kernel"]
    return "\n".join(H + A.L + Ft) + "\n"


if __name__ == "__main__":
    out = sys.argv[1] if len(sys.argv) > 1 else "k.s"
    opt = {}
    for a in sys.argv[2:]:
        k, v = a.split("=")
        opt[k] = int(v)
    open(out, "w").write(gen(opt))
```

```python
import sys

NAME = "parallel_sum__gqa_block_cached__glu_gated_geglu__decode_kernel"

WS_P1, P1_MAT, P1_KQ, P1_B = 0x0, 0x80000, 0x20000, 0x4000
WS_ST, WS_TK, WS_OP, WS_FP, WS_DBG = 0x180000, 0x190000, 0x200000, 0x300000, 0x400000
WS_SIZE = 0x10000000
L_FLAG = 0x0
F_XN, F_P1, F_Q, F_O, F_P2, F_TK, F_CL = 0, 4, 8, 12, 16, 20, 24
L_XN, XN_PITCH = 0x100, 528
L_P1, P1_PITCH = 0x1200, 320
P1_WAVE, P1_UNIT = 8 * 320, 4 * 8 * 320
L_Q, Q_PITCH = 0x8A00, 288
L_ST = 0x9400
L_O, O_SLAB, O_PITCH = 0x9800, 8 * 528, 528
L_T = L_O + 4 * O_SLAB
LDS_BYTES = L_T + 4 * O_SLAB
SPIN_MAX = 20000
OOB = 0x7ff00000

LOG2E = 0x3FB8AA3B
SCALE = 0x3DB504F3


class Asm:
    def __init__(self):
        self.L = []
        self.uid = 0
    def __call__(self, s):
        if s == "s_mov_b64 exec, 0xffffffff":
            self.L.append("    s_mov_b32 exec_lo, -1"); self.L.append("    s_mov_b32 exec_hi, 0")
            return
        self.L.append("    " + s)
    def label(self, s):
        self.L.append(s + ":")
    def new(self, p="L"):
        self.uid += 1
        return f"{p}_{self.uid}"
    def c(self, s):
        self.L.append("    ; " + s)


def vr(a, n=1):
    return f"v{a}" if n == 1 else f"v[{a}:{a+n-1}]"


def gen(opt):
    A = Asm()
    stamps = opt.get("stamps", False)
    psleep = opt.get("psleep", 2)

    def stamp(idx):
        if not stamps:
            return
        A("s_memrealtime s[90:91]")
        A("s_waitcnt lgkmcnt(0)")
        A(f"v_writelane_b32 v9, s90, {idx}")

    def stamp_flush():
        if not stamps:
            return
        A("s_lshl_b32 s92, s2, 4"); A("s_add_u32 s92, s92, s3"); A("s_lshl_b32 s92, s92, 6")
        A(f"s_add_u32 s92, s92, {WS_DBG}")
        A("s_mov_b64 exec, 0xffff")
        A("v_lshlrev_b32 v8, 2, v0")
        A("buffer_store_dword v9, v8, s[36:39], s92 offen")
        A("s_mov_b64 exec, -1")

    def srd(d, lo, hi, size):
        A(f"s_mov_b32 s{d}, {lo}"); A(f"s_mov_b32 s{d+1}, {hi}")
        A(f"s_mov_b32 s{d+2}, {size}"); A(f"s_mov_b32 s{d+3}, 0x00020000")

    def lds_wait(flag, count, vt, va, sleep=1):
        l = A.new("Llw"); d = A.new("Llwd")
        A.label(l)
        A(f"ds_read_b32 {vr(vt)}, {vr(va)} offset:{L_FLAG+flag}")
        A("s_waitcnt lgkmcnt(0)")
        A(f"v_readfirstlane_b32 s60, {vr(vt)}")
        A(f"s_cmp_ge_u32 s60, {count}")
        A(f"s_cbranch_scc1 {d}")
        if sleep:
            A(f"s_sleep {sleep}")
        A(f"s_branch {l}")
        A.label(d)

    def lds_signal(flag, vt, va):
        A("s_waitcnt lgkmcnt(0)")
        A("s_mov_b64 exec, 1")
        A(f"v_mov_b32 {vr(vt)}, 1")
        A(f"ds_add_u32 {vr(va)}, {vr(vt)} offset:{L_FLAG+flag}")
        A("s_mov_b64 exec, -1")

    def xrow_reduce(op, vs, ts):
        for sw in ("v_permlane16_swap_b32", "v_permlane32_swap_b32"):
            for i, v in enumerate(vs):
                A(f"v_mov_b32 {vr(ts[2*i])}, {vr(v)}")
                A(f"v_mov_b32 {vr(ts[2*i+1])}, {vr(v)}")
            A("s_nop 1")
            for i, v in enumerate(vs):
                A(f"{sw} {vr(ts[2*i])}, {vr(ts[2*i+1])}")
            A("s_nop 1")
            for i, v in enumerate(vs):
                A(f"{op} {vr(v)}, {vr(ts[2*i])}, {vr(ts[2*i+1])}")

    def row_reduce_add(vs):
        for ctl in ("quad_perm:[1,0,3,2]", "quad_perm:[2,3,0,1]", "row_half_mirror", "row_mirror"):
            if len(vs) < 3:
                A("s_nop 1")
            for v in vs:
                A(f"v_add_f32_dpp {vr(v)}, {vr(v)}, {vr(v)} {ctl} row_mask:0xf bank_mask:0xf")

    def bf16r(v, t):
        A(f"v_cvt_pk_bf16_f32 {vr(t)}, {vr(v)}, {vr(v)}")
        A(f"v_lshlrev_b32 {vr(v)}, 16, {vr(t)}")

    def sentinel_pending(regs, vt):
        A(f"v_max3_u32 {vr(vt)}, {vr(regs[0])}, {vr(regs[1])}, {vr(regs[2])}")
        rest = regs[3:]
        while len(rest) >= 2:
            A(f"v_max3_u32 {vr(vt)}, {vr(vt)}, {vr(rest[0])}, {vr(rest[1])}")
            rest = rest[2:]
        if rest:
            A(f"v_max_u32 {vr(vt)}, {vr(vt)}, {vr(rest[0])}")
        A(f"v_cmp_eq_u32 vcc, -1, {vr(vt)}")

    def poll_loop(loads, regs, vt, mask="-1"):
        l = A.new("Lpoll"); d = A.new("Lpolld"); f = A.new("Lpollf")
        A(f"s_mov_b64 exec, {mask}")
        A("s_mov_b32 s61, 0")
        A(f"s_branch {f}")
        A.label(l)
        if psleep:
            A(f"s_sleep {psleep}")
        A.label(f)
        loads()
        A("s_waitcnt vmcnt(0)")
        sentinel_pending(regs, vt)
        A("s_add_u32 s61, s61, 1")
        A(f"s_cmp_ge_u32 s61, s62")
        A(f"s_cbranch_scc1 {d}")
        A("s_and_b64 exec, exec, vcc")
        A(f"s_cbranch_scc1 {l}")
        A.label(d)
        A("s_mov_b64 exec, -1")

    H = []
    H.append(f"; @launch grid=(256,1,1) block=(512,1,1) lds={LDS_BYTES}")
    H.append('.amdgcn_target "amdgcn-amd-amdhsa--gfx950"')
    H.append(".text"); H.append(f".globl {NAME}"); H.append(".p2align 8"); H.append(f".type {NAME},@function")
    H.append(f"{NAME}:")

    A("s_cmp_ge_u32 s2, 256")
    A("s_cbranch_scc1 L_end")
    A("s_load_dwordx16 s[4:19], s[0:1], 0")
    A("s_load_dwordx8 s[20:27], s[0:1], 64")
    A("v_lshrrev_b32 v1, 6, v0")
    A("v_and_b32 v0, 63, v0")
    A("v_mov_b32 v9, 0")
    A("v_readfirstlane_b32 s3, v1")
    A("v_lshlrev_b32 v3, 2, v0")
    A("s_lshr_b32 s56, s2, 3")
    A("s_and_b32 s57, s2, 7")
    A(f"s_mov_b32 s62, {SPIN_MAX}")
    A("s_mov_b32 s58, 0x05040100")
    A("s_mov_b32 s59, 0x07060302")
    A("s_mul_i32 s63, s56, 7"); A("s_add_u32 s63, s63, s57"); A("s_add_u32 s64, s56, 224")
    A("s_cmp_eq_u32 s57, 7"); A("s_cselect_b32 s63, s64, s63")
    A("s_and_b32 s64, s63, 3")
    A("s_lshr_b32 s65, s63, 2")
    A("s_lshl_b32 s66, s64, 17"); A("s_lshl_b32 s60, s65, 8"); A("s_add_u32 s66, s66, s60")
    A("v_and_b32 v5, 15, v0"); A("v_lshrrev_b32 v6, 4, v0")
    A("v_mov_b32 v7, 0")
    A("s_cmp_lg_u32 s3, 4")
    A("s_cbranch_scc1 L_noz")
    A("ds_write_b32 v3, v9")
    A(f"v_mov_b32 v8, {4*(3+opt.get('nx',2))}")
    A(f"ds_write_b32 v7, v8 offset:{L_FLAG+F_TK}")
    A.label("L_noz")
    A("s_waitcnt lgkmcnt(0)")
    srd(36, "s26", "s27", WS_SIZE)
    stamp(0)
    A("s_cmp_lt_u32 s3, 4")
    A("s_cbranch_scc1 L_G")

    vK, vV, vM, vL = 1, 2, 3, 4
    T = [5, 6, 7, 8]
    S, P, VOP, Q, O, BUF = 10, 14, 16, 24, 40, 72
    NB, NX = 3, opt.get("nx", 2)
    TK = 84
    A.c("---------------- attention waves")
    A("s_setprio 3")
    for i in range(4):
        A(f"v_mov_b32 {vr(O+i)}, -1")
    A("s_sub_u32 s64, s3, 4")
    A("v_lshlrev_b32 v2, 14, v6"); A("v_lshl_add_u32 v2, v5, 4, v2")
    A("v_lshlrev_b32 v1, 4, v0")
    A("s_cmp_eq_u32 s64, 3"); A("s_cbranch_scc1 L_clrst")
    A("s_lshl_b32 s60, s64, 19"); A("s_add_u32 s70, s66, s60"); A(f"s_add_u32 s71, s70, {4*P1_B}")
    A(f"buffer_store_dwordx4 {vr(O,4)}, v2, s[36:39], s70 offen sc1")
    A(f"buffer_store_dwordx4 {vr(O,4)}, v2, s[36:39], s71 offen sc1")
    A("s_branch L_clr2")
    A.label("L_clrst")
    A("s_lshl_b32 s60, s56, 9"); A("s_lshl_b32 s61, s57, 3"); A("s_add_u32 s60, s60, s61"); A(f"s_add_u32 s60, s60, {WS_ST}")
    A("v_lshlrev_b32 v2, 6, v0")
    A("s_mov_b64 exec, 0xff")
    A(f"buffer_store_dwordx2 {vr(O,2)}, v2, s[36:39], s60 offen sc1")
    A("s_mov_b64 exec, -1")
    A.label("L_clr2")
    A("s_lshl_b32 s61, s64, 10")
    A("s_lshl_b32 s60, s2, 12"); A("s_add_u32 s60, s60, s61"); A(f"s_add_u32 s71, s60, {WS_OP}")
    A(f"buffer_store_dwordx4 {vr(O,4)}, v1, s[36:39], s71 offen sc1")
    A("s_lshl_b32 s60, s57, 5"); A("s_add_u32 s60, s60, s56"); A("s_lshl_b32 s60, s60, 12"); A("s_add_u32 s60, s60, s61"); A(f"s_add_u32 s72, s60, {WS_FP}")
    A(f"buffer_store_dwordx4 {vr(O,4)}, v1, s[36:39], s72 offen sc1")
    srd(52, "s24", "s25", 256)
    A("s_and_b32 s73, s2, 3"); A("s_lshl_b32 s73, s73, 6")
    A("s_lshl_b32 s63, s56, 21")
    A("s_add_u32 s28, s6, s63"); A("s_addc_u32 s29, s7, 0"); A("s_mov_b32 s30, 0x200000"); A("s_mov_b32 s31, 0x00020000")
    A("s_add_u32 s32, s8, s63"); A("s_addc_u32 s33, s9, 0"); A("s_mov_b32 s34, 0x200000"); A("s_mov_b32 s35, 0x00020000")
    A(f"v_lshlrev_b32 {vr(vK)}, 8, v5"); A(f"v_lshl_add_u32 {vr(vK)}, v6, 4, {vr(vK)}")
    A(f"v_lshlrev_b32 {vr(vV)}, 10, v6"); A(f"v_lshl_add_u32 {vr(vV)}, v5, 4, {vr(vV)}")
    A("s_lshl_b32 s65, s57, 18")
    A("v_mov_b32 v22, 1"); A("v_mov_b32 v21, 0")
    A("s_barrier")
    def tk_req():
        A("s_mov_b64 exec, 1")
        A(f"ds_add_rtn_u32 v23, v21, v22 offset:{L_FLAG+F_TK}")
        A("s_mov_b64 exec, -1")
    A("s_waitcnt vmcnt(0)")
    A("s_mov_b64 exec, 1")
    A(f"ds_add_rtn_u32 v20, v21, v22 offset:{L_FLAG+F_CL}")
    A(f"ds_add_rtn_u32 v23, v21, v22 offset:{L_FLAG+F_TK}")
    A("s_waitcnt lgkmcnt(0)")
    A("v_readfirstlane_b32 s60, v20")
    A("s_cmp_lg_u32 s60, 3"); A("s_cbranch_scc1 L_noarr")
    A("buffer_atomic_add v22, v21, s[52:55], s73 offen")
    A.label("L_noarr")
    A("s_mov_b64 exec, -1")
    A("s_setprio 0")
    stamp(5)

    def a_issue(b, first=False):
        sk = A.new("Lnoiss")
        if first:
            A(f"s_add_u32 s{TK+b}, s64, {4*b}")
            A(f"s_lshl_b32 s68, s{TK+b}, 12"); A("s_add_u32 s68, s68, s65")
        else:
            A("s_waitcnt lgkmcnt(0)")
            A(f"v_readfirstlane_b32 s{TK+b}, v23")
            tk_req()
            A(f"s_lshl_b32 s68, s{TK+b}, 12"); A("s_add_u32 s68, s68, s65")
            A(f"s_cmp_ge_u32 s{TK+b}, 64")
            A(f"s_cbranch_scc1 {sk}")
        for j in range(4):
            A(f"buffer_load_dwordx4 {vr(BUF+32*b+4*j,4)}, {vr(vK)}, s[28:31], s68 offen offset:{64*j} nt")
        for j in range(4):
            A(f"buffer_load_dwordx4 {vr(BUF+32*b+16+4*j,4)}, {vr(vV)}, s[32:35], s68 offen offset:{256*j} nt")
        A.label(sk)

    def a_wait(b, base):
        if b >= NB:
            d = A.new("Lw")
            A(f"s_waitcnt vmcnt({base + 8*(NB+NX-1-b) + 8*NB})")
            A(f"s_cmp_lt_u32 s{TK+NB-1}, 64"); A(f"s_cbranch_scc1 {d}")
            A(f"s_waitcnt vmcnt(0)")
            A.label(d)
            return
        d = A.new("Lw")
        A(f"s_waitcnt vmcnt({base+16})")
        A(f"s_cmp_lt_u32 s{TK+(b+2)%3}, 64"); A(f"s_cbranch_scc1 {d}")
        A(f"s_waitcnt vmcnt({base+8})")
        A(f"s_cmp_lt_u32 s{TK+(b+1)%3}, 64"); A(f"s_cbranch_scc1 {d}")
        A(f"s_waitcnt vmcnt({base})")
        A.label(d)

    def a_proc(b):
        kb = BUF + 32 * b; vb = kb + 16
        a_wait(b, 4)
        A(f"v_mfma_f32_16x16x32_bf16 {vr(S,4)}, {vr(kb,4)}, {vr(Q,4)}, 0")
        for j in range(1, 4):
            A(f"v_mfma_f32_16x16x32_bf16 {vr(S,4)}, {vr(kb+4*j,4)}, {vr(Q+4*j,4)}, {vr(S,4)}")
        A("s_nop 7")
        t0, t1, t2, t3 = T
        for rnd in range(2):
            A(f"v_cvt_pk_bf16_f32 {vr(t0)}, {vr(S)}, {vr(S+1)}")
            A(f"v_cvt_pk_bf16_f32 {vr(t1)}, {vr(S+2)}, {vr(S+3)}")
            A(f"v_lshlrev_b32 {vr(S)}, 16, {vr(t0)}")
            A(f"v_and_b32 {vr(S+1)}, 0xffff0000, {vr(t0)}")
            A(f"v_lshlrev_b32 {vr(S+2)}, 16, {vr(t1)}")
            A(f"v_and_b32 {vr(S+3)}, 0xffff0000, {vr(t1)}")
            if rnd == 0:
                for r in range(4):
                    A(f"v_mul_f32 {vr(S+r)}, s70, {vr(S+r)}")
        A(f"v_max3_f32 {vr(t2)}, {vr(S)}, {vr(S+1)}, {vr(S+2)}")
        A(f"v_max3_f32 {vr(t2)}, {vr(t2)}, {vr(S+3)}, {vr(vM)}")
        xrow_reduce("v_max_f32", [t2], [t0, t1])
        A(f"v_sub_f32 {vr(t3)}, {vr(vM)}, {vr(t2)}")
        A(f"v_mul_f32 {vr(t3)}, s69, {vr(t3)}")
        A(f"v_exp_f32 {vr(t3)}, {vr(t3)}")
        A(f"v_mov_b32 {vr(vM)}, {vr(t2)}")
        A(f"v_mul_f32 {vr(t2)}, s69, {vr(t2)}")
        for r in range(4):
            A(f"v_fma_f32 {vr(S+r)}, {vr(S+r)}, s69, -{vr(t2)}")
        for r in range(4):
            A(f"v_exp_f32 {vr(S+r)}, {vr(S+r)}")
        A(f"v_mul_f32 {vr(vL)}, {vr(vL)}, {vr(t3)}")
        A(f"v_add_f32 {vr(t0)}, {vr(S)}, {vr(S+1)}")
        A(f"v_add_f32 {vr(t1)}, {vr(S+2)}, {vr(S+3)}")
        A(f"v_cvt_pk_bf16_f32 {vr(P)}, {vr(S)}, {vr(S+1)}")
        A(f"v_cvt_pk_bf16_f32 {vr(P+1)}, {vr(S+2)}, {vr(S+3)}")
        A(f"v_add_f32 {vr(vL)}, {vr(vL)}, {vr(t0)}")
        A(f"v_add_f32 {vr(vL)}, {vr(vL)}, {vr(t1)}")
        sk = A.new("Lnors")
        A(f"v_cmp_neq_f32 vcc, 1.0, {vr(t3)}")
        A("s_cbranch_vccz " + sk)
        for i in range(32):
            A(f"v_mul_f32 {vr(O+i)}, {vr(O+i)}, {vr(t3)}")
        A.label(sk)
        a_wait(b, 0)
        for j in range(8):
            op = VOP + 2 * (j & 1)
            sel = "s58" if (j & 1) == 0 else "s59"
            dw = j >> 1
            A(f"v_perm_b32 {vr(op)}, {vr(vb+4+dw)}, {vr(vb+dw)}, {sel}")
            A(f"v_perm_b32 {vr(op+1)}, {vr(vb+12+dw)}, {vr(vb+8+dw)}, {sel}")
            A("s_nop 1")
            A(f"v_mfma_f32_16x16x16_bf16 {vr(O+4*j,4)}, {vr(op,2)}, {vr(P,2)}, {vr(O+4*j,4)}")

    for b in range(NB + NX):
        a_issue(b, True)
    for i in range(32):
        A(f"v_mov_b32 {vr(O+i)}, 0")
    A(f"v_mov_b32 {vr(vM)}, 0xff800000")
    A(f"v_mov_b32 {vr(vL)}, 0")
    A("s_mov_b32 s67, 1")
    stamp(1)
    lds_wait(F_Q, 4, 8, 7, sleep=2)
    stamp(2)
    A("v_and_b32 v7, 7, v0"); A(f"v_mul_u32_u24 v7, {Q_PITCH}, v7"); A("v_lshl_add_u32 v7, v6, 4, v7")
    for j in range(4):
        A(f"ds_read_b128 {vr(Q+4*j,4)}, v7 offset:{L_Q+64*j}")
    A(f"s_mov_b32 s69, 0x{LOG2E:x}")
    A(f"s_mov_b32 s70, 0x{SCALE:x}")
    A("s_waitcnt lgkmcnt(0)")
    A.label("L_Aloop")
    for b in range(NB):
        A(f"s_cmp_ge_u32 s{TK+b}, 64")
        A("s_cbranch_scc1 L_Adone")
        a_proc(b)
        a_issue(b)
    A("s_cmp_eq_u32 s67, 0")
    A("s_cbranch_scc1 L_Aloop")
    A("s_mov_b32 s67, 0")
    for b in range(NB, NB + NX):
        a_proc(b)
    A("s_branch L_Aloop")
    A.label("L_Adone")
    A("s_setprio 3")
    stamp(3)
    xrow_reduce("v_add_f32", [vL], [T[0], T[1]])
    A("v_and_b32 v5, 15, v0"); A("v_lshrrev_b32 v6, 4, v0")
    A(f"v_mul_u32_u24 v7, {O_PITCH}, v5"); A("v_lshl_add_u32 v7, v6, 7, v7")
    A(f"s_mul_i32 s60, s64, {O_SLAB}")
    A("v_add_u32 v7, s60, v7")
    A("s_lshl_b32 s60, s64, 3")
    A("v_lshlrev_b32 v8, 5, v5"); A("v_add_u32 v8, s60, v8")
    A("v_cmp_gt_u32 vcc, 8, v5")
    A("s_and_b64 exec, exec, vcc")
    for j in range(8):
        A(f"ds_write_b128 v7, {vr(O+4*j,4)} offset:{L_O+16*j}")
    A(f"v_mov_b32 {vr(S)}, {vr(vM)}"); A(f"v_mov_b32 {vr(S+1)}, {vr(vL)}")
    A(f"ds_write_b64 v8, {vr(S,2)} offset:{L_ST}")
    A("s_mov_b64 exec, -1")
    A("v_mov_b32 v7, 0")
    lds_signal(F_O, 8, 7)
    A("v_lshrrev_b32 v5, 5, v0"); A("s_lshl_b32 s60, s64, 1"); A("v_add_u32 v5, s60, v5")
    A("v_and_b32 v6, 31, v0")
    A(f"v_mul_u32_u24 v20, {O_PITCH}, v5"); A("v_lshl_add_u32 v20, v6, 4, v20")
    A("v_lshlrev_b32 v21, 5, v5")
    A("v_lshlrev_b32 v23, 6, v5")
    A("v_lshlrev_b32 v22, 9, v5"); A("v_lshl_add_u32 v22, v6, 4, v22")
    A("s_lshl_b32 s71, s2, 12"); A(f"s_add_u32 s71, s71, {WS_OP}")
    A("s_lshl_b32 s72, s56, 9"); A("s_lshl_b32 s61, s57, 3"); A("s_add_u32 s72, s72, s61"); A(f"s_add_u32 s72, s72, {WS_ST}")
    lds_wait(F_O, 4, 8, 7, sleep=0)
    for i in range(2):
        A(f"ds_read_b128 {vr(Q+4*i,4)}, v21 offset:{L_ST+16*i}")
    for a in range(4):
        A(f"ds_read_b128 {vr(BUF+4*a,4)}, v20 offset:{L_O+O_SLAB*a}")
    A("s_waitcnt lgkmcnt(4)")
    A(f"v_max3_f32 v10, {vr(Q)}, {vr(Q+2)}, {vr(Q+4)}")
    A(f"v_max_f32 v10, v10, {vr(Q+6)}")
    for a in range(4):
        A(f"v_sub_f32 {vr(Q+2*a)}, {vr(Q+2*a)}, v10")
    for a in range(4):
        A(f"v_mul_f32 {vr(Q+2*a)}, s69, {vr(Q+2*a)}")
    for a in range(4):
        A(f"v_exp_f32 {vr(Q+2*a)}, {vr(Q+2*a)}")
    A("s_nop 0")
    A(f"v_mul_f32 v11, {vr(Q)}, {vr(Q+1)}")
    for a in range(1, 4):
        A(f"v_fmac_f32 v11, {vr(Q+2*a)}, {vr(Q+2*a+1)}")
    A("s_waitcnt lgkmcnt(0)")
    for r in range(4):
        A(f"v_mul_f32 {vr(O+r)}, {vr(Q)}, {vr(BUF+r)}")
    for a in range(1, 4):
        for r in range(4):
            A(f"v_fmac_f32 {vr(O+r)}, {vr(Q+2*a)}, {vr(BUF+4*a+r)}")
    for r in range(4):
        A(f"v_min_u32 {vr(O+r)}, -2, {vr(O+r)}")
    A("v_min_u32 v10, -2, v10"); A("v_min_u32 v11, -2, v11")
    A(f"buffer_store_dwordx4 {vr(O,4)}, v22, s[36:39], s71 offen sc1")
    A("v_cmp_eq_u32 vcc, 0, v6")
    A("s_and_b64 exec, exec, vcc")
    A("buffer_store_dwordx2 v[10:11], v23, s[36:39], s72 offen sc1")
    A("s_mov_b64 exec, -1")
    A.label("L_Aexit")
    stamp(4)
    stamp_flush()
    A("s_endpgm")

    A.label("L_G")
    A.c("---------------- GEMV / control waves")
    X, XS, XOP, WQ, WG, WU, TMP = 10, 26, 30, 40, 72, 104, 136
    srd(32, "s4", "s5", 16384)
    A("v_lshlrev_b32 v1, 5, v0")
    A("s_lshl_b32 s60, s3, 12")
    for r in range(2):
        for hlf in range(2):
            A(f"buffer_load_dwordx4 {vr(X+8*r+4*hlf,4)}, v1, s[32:35], s60 offen offset:{2048*r+16*hlf}")
    A("v_lshlrev_b32 v2, 3, v0")
    A("s_lshl_b32 s61, s64, 9"); A("s_add_u32 s60, s60, s61")
    for r in range(2):
        A(f"buffer_load_dwordx2 {vr(XS+2*r,2)}, v2, s[32:35], s60 offen offset:{2048*r}")
    srd(28, "s10", "s11", 0x800000)
    A("s_lshl_b32 s67, s64, 2"); A("s_add_u32 s67, s67, s3"); A("s_lshl_b32 s67, s67, 6")
    A("s_lshl_b32 s61, s65, 7")
    A("s_lshl_b32 s68, s67, 13"); A("s_add_u32 s68, s68, s61")
    A("v_lshlrev_b32 v3, 16, v6"); A("v_lshl_add_u32 v3, v5, 3, v3")

    def w_issue(base, v, sd, pitch):
        for kb in range(2):
            for i in range(8):
                A(f"buffer_load_dwordx2 {vr(base+16*kb+2*i,2)}, {v}, s[{sd}:{sd+3}], s68 offen nt")
                if not (kb == 1 and i == 7):
                    A(f"s_add_u32 s68, s68, {pitch*(25 if i == 7 else 1)}")
    w_issue(WQ, "v3", 28, 8192)
    touch = opt.get("touch", 0)
    if touch:
        A("s_cmp_eq_u32 s3, 1"); A("s_cselect_b32 s40, s18, s16"); A("s_cselect_b32 s41, s19, s17")
        A("s_cmp_eq_u32 s3, 2"); A("s_cselect_b32 s40, s12, s40"); A("s_cselect_b32 s41, s13, s41")
        A("s_cmp_eq_u32 s3, 3"); A("s_cselect_b32 s40, s20, s40"); A("s_cselect_b32 s41, s21, s41")
        A("s_mov_b32 s42, 0x700000"); A("s_mov_b32 s43, 0x00020000")
        A("s_cmp_eq_u32 s3, 2"); A("s_cselect_b32 s42, 0x800000, s42")
        A(f"s_mul_i32 s60, s64, {256*7168}"); A("s_add_u32 s60, s60, s61")
        A("s_lshl_b32 s69, s56, 18")
        A(f"s_mul_i32 s70, s56, {112*2048}")
        A("s_cmp_eq_u32 s3, 3"); A("s_cselect_b32 s69, s70, s69")
        A("s_lshl_b32 s70, s57, 8"); A("s_add_u32 s69, s69, s70")
        A("s_cmp_lt_u32 s3, 2"); A("s_cselect_b32 s60, s60, s69")
        A("s_movk_i32 s70, 8192"); A("s_cselect_b32 s70, 57344, s70")
        A("v_mul_lo_u32 v4, v0, s70")
        A("s_mov_b64 exec, 0xffffffff")
        A("buffer_load_dword v39, v4, s[40:43], s60 offen")
        A("s_mov_b64 exec, -1")
    A("s_barrier")
    stamp(1)
    SM = [TMP, TMP + 1]; SQ = [TMP + 2, TMP + 3]; TT = list(range(TMP + 4, TMP + 12))
    A("s_mov_b32 s60, 0x3f803f80")
    for i in range(4):
        A(f"v_mov_b32 {vr(TMP+i)}, 0")
    A(f"s_waitcnt vmcnt({18+touch})")
    for i in range(8):
        for r in range(2):
            A(f"v_dot2c_f32_bf16 {vr(SM[r])}, s60, {vr(X+8*r+i)}")
            A(f"v_dot2c_f32_bf16 {vr(SQ[r])}, {vr(X+8*r+i)}, {vr(X+8*r+i)}")
    A("s_nop 2")
    row_reduce_add(SM + SQ)
    xrow_reduce("v_add_f32", SM + SQ, TT)
    for r in range(2):
        A(f"v_mul_f32 {vr(SM[r])}, 0x3a800000, {vr(SM[r])}")
        A(f"v_mul_f32 {vr(SQ[r])}, 0x3a800000, {vr(SQ[r])}")
    for r in range(2):
        A(f"v_fma_f32 {vr(SQ[r])}, -{vr(SM[r])}, {vr(SM[r])}, {vr(SQ[r])}")
        A(f"v_max_f32 {vr(SQ[r])}, 0, {vr(SQ[r])}")
    for r in range(2):
        bf16r(SQ[r], TT[r])
    for r in range(2):
        A(f"v_add_f32 {vr(SQ[r])}, 0x3727c5ac, {vr(SQ[r])}")
    for r in range(2):
        bf16r(SQ[r], TT[r])
    for r in range(2):
        A(f"v_sqrt_f32 {vr(SQ[r])}, {vr(SQ[r])}")
    for r in range(2):
        bf16r(SM[r], TT[2 + r])
    for r in range(2):
        bf16r(SQ[r], TT[r])
    for r in range(2):
        A(f"v_rcp_f32 {vr(SQ[r])}, {vr(SQ[r])}")
    A(f"s_waitcnt vmcnt({16+touch})")
    for r in range(2):
        for i in range(2):
            a, b2, t = TT[0], TT[1], TT[2]
            src = XS + 2 * r + i
            A(f"v_lshlrev_b32 {vr(a)}, 16, {vr(src)}")
            A(f"v_and_b32 {vr(b2)}, 0xffff0000, {vr(src)}")
            A(f"v_sub_f32 {vr(a)}, {vr(a)}, {vr(SM[r])}")
            A(f"v_sub_f32 {vr(b2)}, {vr(b2)}, {vr(SM[r])}")
            A(f"v_cvt_pk_bf16_f32 {vr(t)}, {vr(a)}, {vr(b2)}")
            A(f"v_lshlrev_b32 {vr(a)}, 16, {vr(t)}")
            A(f"v_and_b32 {vr(b2)}, 0xffff0000, {vr(t)}")
            A(f"v_mul_f32 {vr(a)}, {vr(a)}, {vr(SQ[r])}")
            A(f"v_mul_f32 {vr(b2)}, {vr(b2)}, {vr(SQ[r])}")
            A(f"v_cvt_pk_bf16_f32 {vr(src)}, {vr(a)}, {vr(b2)}")
    A(f"s_mul_i32 s60, s3, {2*XN_PITCH}")
    A("v_add_u32 v2, s60, v2")
    for r in range(2):
        A(f"ds_write_b64 v2, {vr(XS+2*r,2)} offset:{L_XN+XN_PITCH*r}")
    lds_signal(F_XN, 8, 7)
    stamp(2)
    A("v_and_b32 v3, 7, v0"); A(f"v_mul_u32_u24 v3, {XN_PITCH}, v3"); A("v_lshl_add_u32 v3, v6, 4, v3")
    A("s_lshl_b32 s60, s3, 7"); A("v_add_u32 v3, s60, v3")
    A(f"v_mul_u32_u24 v2, {P1_PITCH}, v5"); A("v_lshl_add_u32 v2, v6, 4, v2")
    A(f"s_mul_i32 s60, s3, {P1_WAVE}"); A("v_add_u32 v2, s60, v2")
    A("v_cmp_gt_u32 s[74:75], 8, v5")
    A("v_and_b32 v4, 1, v6"); A("s_lshl_b32 s60, s3, 1"); A("v_add_u32 v4, s60, v4")
    A(f"v_mul_u32_u24 v1, {P1_PITCH}, v4"); A("v_lshl_add_u32 v1, v5, 2, v1")
    A("v_lshrrev_b32 v8, 5, v0")
    A(f"v_mul_u32_u24 v38, {P1_UNIT}, v8"); A("v_add_u32 v1, v1, v38")
    A(f"v_add_u32 v1, {L_P1}, v1")
    A("v_lshlrev_b32 v4, 14, v4"); A("v_lshl_add_u32 v4, v5, 4, v4"); A("v_lshl_add_u32 v4, v8, 19, v4")
    lds_wait(F_XN, 4, 8, 7, sleep=0)
    for kb in range(2):
        A(f"ds_read_b128 {vr(XOP+4*kb,4)}, v3 offset:{L_XN+64*kb}")

    def unit_mfma(wbase, acc, opt_, waits):
        for kb in range(2):
            A(f"s_waitcnt vmcnt({waits[kb]}) lgkmcnt(0)")
            wb = wbase + 16 * kb
            for j in range(4):
                op = opt_ + 4 * (j & 1)
                sel = "s58" if (j & 1) == 0 else "s59"
                dw = j >> 1
                for t in range(4):
                    A(f"v_perm_b32 {vr(op+t)}, {vr(wb+4*t+2+dw)}, {vr(wb+4*t+dw)}, {sel}")
                A("s_nop 1")
                c = "0" if kb == 0 else vr(acc + 4 * j, 4)
                A(f"v_mfma_f32_16x16x32_bf16 {vr(acc+4*j,4)}, {vr(op,4)}, {vr(XOP+4*kb,4)}, {c}")

    def unit_write(acc, unit):
        A("s_mov_b64 exec, s[74:75]")
        for j in range(4):
            A(f"ds_write_b128 v2, {vr(acc+4*j,4)} offset:{L_P1+P1_UNIT*unit+64*j}")
        A("s_mov_b64 exec, -1")

    def unit_reduce(unit0, R, mask, soff):
        A(f"s_mov_b64 exec, {mask}")
        for w in range(4):
            off = (P1_UNIT * unit0 + P1_WAVE * w) // 4
            A(f"v_add_u32 v8, {P1_UNIT*unit0 + P1_WAVE*w}, v1")
            A(f"ds_read2_b32 {vr(R+4*w,2)}, v8 offset0:0 offset1:16")
            A(f"ds_read2_b32 {vr(R+4*w+2,2)}, v8 offset0:32 offset1:48")
        A("s_waitcnt lgkmcnt(0)")
        for e in range(4):
            A(f"v_add_f32 {vr(R+e)}, {vr(R+e)}, {vr(R+4+e)}")
            A(f"v_add_f32 {vr(R+8+e)}, {vr(R+8+e)}, {vr(R+12+e)}")
        for e in range(4):
            A(f"v_add_f32 {vr(R+e)}, {vr(R+e)}, {vr(R+8+e)}")
        for e in range(4):
            A(f"v_min_u32 {vr(R+e)}, -2, {vr(R+e)}")
        A(f"buffer_store_dwordx4 {vr(R,4)}, v4, s[36:39], {soff} offen sc1")
        A("s_mov_b64 exec, -1")

    srd(52, "s24", "s25", 256)
    A("v_lshlrev_b32 v29, 2, v0")
    A("s_mov_b32 s72, 0x00010001"); A("s_mov_b32 s73, 0x00010001")
    unit_mfma(WQ, X, TMP, [8+touch, touch])
    A("s_mov_b64 exec, s[72:73]")
    A("buffer_load_dword v28, v29, s[52:55], 0 offen sc1")
    A("s_mov_b64 exec, -1")
    stamp(3)
    A("s_nop 7")
    unit_write(X, 0)
    lds_signal(F_P1, 8, 7)
    lds_wait(F_P1, 4, 8, 7, sleep=0)
    lds_wait(F_CL, 4, 8, 7, sleep=0)
    unit_reduce(0, WQ, "0xffffffff", "s66")
    stamp(4)
    A("s_lshr_b32 s60, s56, 2"); A("s_lshl_b32 s60, s60, 14")
    A("s_and_b32 s61, s56, 3"); A("s_lshl_b32 s61, s61, 12"); A("s_add_u32 s60, s60, s61")
    A("s_lshl_b32 s61, s3, 10"); A("s_add_u32 s81, s60, s61")
    for k in range(1, 4):
        A(f"s_add_u32 s{81+k}, s81, {P1_KQ*k}")
    A("v_lshlrev_b32 v26, 4, v0")
    A("v_lshrrev_b32 v3, 5, v0"); A("s_lshl_b32 s60, s3, 1"); A("v_add_u32 v3, s60, v3")
    A(f"v_mul_u32_u24 v3, {Q_PITCH}, v3"); A("v_and_b32 v27, 31, v0"); A("v_lshl_add_u32 v3, v27, 3, v3")
    A("s_mov_b32 s61, 0")
    A("s_waitcnt vmcnt(1)")
    A("s_mov_b64 exec, s[72:73]")
    A.label("L_cert1")
    A("v_cmp_ne_u32 vcc, 64, v28")
    A("s_add_u32 s61, s61, 1")
    A("s_cmp_ge_u32 s61, s62"); A("s_cbranch_scc1 L_cert1d")
    A("s_cbranch_vccz L_cert1d")
    A("buffer_load_dword v28, v29, s[52:55], 0 offen sc1")
    A("s_waitcnt vmcnt(0)")
    A("s_branch L_cert1")
    A.label("L_cert1d")
    A("s_mov_b64 exec, -1")
    stamp(14)
    def qloads():
        for k in range(4):
            A(f"buffer_load_dwordx4 {vr(10+4*k,4)}, v26, s[36:39], s{81+k} offen sc1")
    poll_loop(qloads, list(range(10, 26)), 8)
    for e in range(4):
        A(f"v_add_f32 {vr(10+e)}, {vr(10+e)}, {vr(14+e)}")
        A(f"v_add_f32 {vr(18+e)}, {vr(18+e)}, {vr(22+e)}")
    for e in range(4):
        A(f"v_add_f32 {vr(10+e)}, {vr(10+e)}, {vr(18+e)}")
    A("v_cvt_pk_bf16_f32 v10, v10, v11"); A("v_cvt_pk_bf16_f32 v11, v12, v13")
    A(f"ds_write_b64 v3, v[10:11] offset:{L_Q}")
    lds_signal(F_Q, 8, 7)
    stamp(6)
    srd(40, "s16", "s17", 0x700000)
    srd(44, "s18", "s19", 0x700000)
    A("v_mul_u32_u24 v3, 57344, v6"); A("v_lshl_add_u32 v3, v5, 3, v3")
    A("s_lshl_b32 s61, s65, 7"); A("s_mul_i32 s69, s67, 7168"); A("s_add_u32 s69, s69, s61")
    A("s_cmp_lt_u32 s65, 56"); A(f"s_cselect_b32 s69, s69, {OOB}")
    A("s_mov_b32 s68, s69")
    w_issue(WG, "v3", 40, 7168)
    A("s_mov_b32 s68, s69")
    w_issue(WU, "v3", 44, 7168)
    unit_mfma(WG, TMP, X, [24, 16])
    unit_mfma(WU, TMP + 16, X, [8, 0])
    A("s_nop 7")
    unit_write(TMP, 1)
    unit_write(TMP + 16, 2)
    lds_signal(F_P2, 8, 7)
    A(f"s_add_u32 s68, s66, {P1_MAT}")
    lds_wait(F_P2, 4, 8, 7, sleep=0)
    unit_reduce(1, WQ + 16, "-1", "s68")
    stamp(5)
    WO, WD, WOP, OD, STT, ACC2, GU = 40, 72, 104, 72, 26, 136, 104
    srd(40, "s12", "s13", 0x800000)
    srd(44, "s20", "s21", 0x700000)
    for i in range(32):
        A(f"v_mov_b32 {vr(WD+i)}, 0")
    for i in range(32):
        A(f"v_mov_b32 {vr(GU+i)}, 0")
    A("v_lshlrev_b32 v2, 14, v6"); A("v_lshl_add_u32 v2, v5, 4, v2")
    A("s_mul_i32 s60, s56, 112"); A("s_lshl_b32 s61, s3, 5"); A("s_add_u32 s74, s60, s61")
    A("s_lshl_b32 s60, s74, 11"); A("s_lshl_b32 s61, s57, 8"); A("s_add_u32 s60, s60, s61")
    A("s_cmp_eq_u32 s3, 3")
    A("s_cselect_b32 s77, 0, -1"); A("s_mov_b32 s76, -1")
    A("s_mov_b64 exec, s[76:77]")
    for i in range(8):
        A(f"buffer_load_dwordx4 {vr(WD+4*i,4)}, v2, s[44:47], s60 offen offset:{2048*(i&1)} nt")
        if i & 1:
            A("s_add_u32 s60, s60, 4096")
    A("s_mov_b64 exec, -1")
    A("v_lshlrev_b32 v3, 12, v6"); A("v_lshl_add_u32 v3, v5, 4, v3")
    A("s_lshl_b32 s60, s56, 2"); A("s_add_u32 s60, s60, s3"); A("s_lshl_b32 s60, s60, 16"); A("s_add_u32 s60, s60, s61")
    for i4 in range(4):
        for hi in range(2):
            i = i4 + 4 * hi
            A(f"buffer_load_dwordx4 {vr(WO+4*i,4)}, v3, s[40:43], s60 offen offset:{2048*hi} nt")
        A("s_add_u32 s60, s60, 16384")
    A("s_and_b32 s78, s56, 7"); A("s_lshr_b32 s79, s56, 3")
    A("s_lshl_b32 s80, s78, 11"); A("s_lshl_b32 s60, s57, 8"); A("s_add_u32 s80, s80, s60"); A("s_lshl_b32 s60, s79, 6"); A("s_add_u32 s80, s80, s60")
    A("v_lshlrev_b32 v4, 1, v0")
    A("buffer_load_ushort v38, v4, s[32:35], s80 offen")
    A("v_and_b32 v2, 7, v0"); A("v_bfe_u32 v3, v0, 3, 1")
    A("v_lshlrev_b32 v1, 14, v2"); A("v_lshl_add_u32 v1, v3, 18, v1"); A("v_lshl_add_u32 v1, v6, 5, v1")
    A("s_lshl_b32 s60, s74, 2")
    for m in range(2):
        for k in range(2):
            A(f"s_add_u32 s{81+2*m+k}, s60, {P1_MAT*(m+1) + P1_KQ*k}")
    def guloads():
        for m in range(2):
            for k in range(2):
                for h in range(2):
                    A(f"buffer_load_dwordx4 {vr(GU+16*m+8*k+4*h,4)}, v1, s[36:39], s{81+2*m+k} offen offset:{16*h} sc1")
    poll_loop(guloads, list(range(GU, GU + 32)), 8, "s[76:77]")
    stamp(7)
    ROR = "row_ror:8 row_mask:0xf bank_mask:0xf"
    for m in range(2):
        for i in range(8):
            A(f"v_add_f32 {vr(GU+16*m+i)}, {vr(GU+16*m+i)}, {vr(GU+16*m+8+i)}")
    for m in range(2):
        for i in range(8):
            A(f"v_add_f32_dpp {vr(GU+16*m+i)}, {vr(GU+16*m+i)}, {vr(GU+16*m+i)} {ROR}")
    A("s_mov_b32 s60, 0x3d372713")
    A("s_mov_b32 s61, 0xc0135761")
    HOPR = 34
    for i in range(4):
        g0, g1, u0, u1, z0, z1 = 18, 19, 20, 21, 22, 23
        A(f"v_cvt_pk_bf16_f32 {vr(z0)}, {vr(GU+2*i)}, {vr(GU+2*i+1)}")
        A(f"v_cvt_pk_bf16_f32 {vr(z1)}, {vr(GU+16+2*i)}, {vr(GU+16+2*i+1)}")
        A(f"v_lshlrev_b32 {vr(g0)}, 16, {vr(z0)}"); A(f"v_and_b32 {vr(g1)}, 0xffff0000, {vr(z0)}")
        A(f"v_lshlrev_b32 {vr(u0)}, 16, {vr(z1)}"); A(f"v_and_b32 {vr(u1)}, 0xffff0000, {vr(z1)}")
        for g, z in ((g0, z0), (g1, z1)):
            A(f"v_mul_f32 {vr(z)}, {vr(g)}, {vr(g)}")
            A(f"v_mul_f32 {vr(z)}, s60, {vr(z)}")
            A(f"v_fma_f32 {vr(z)}, {vr(z)}, {vr(g)}, {vr(g)}")
            A(f"v_mul_f32 {vr(z)}, s61, {vr(z)}")
            A(f"v_exp_f32 {vr(z)}, {vr(z)}")
            A("s_nop 0")
            A(f"v_add_f32 {vr(z)}, 1.0, {vr(z)}")
            A(f"v_rcp_f32 {vr(z)}, {vr(z)}")
            A("s_nop 0")
            A(f"v_mul_f32 {vr(g)}, {vr(g)}, {vr(z)}")
        A(f"v_cvt_pk_bf16_f32 {vr(z0)}, {vr(g0)}, {vr(g1)}")
        A(f"v_lshlrev_b32 {vr(g0)}, 16, {vr(z0)}"); A(f"v_and_b32 {vr(g1)}, 0xffff0000, {vr(z0)}")
        A(f"v_mul_f32 {vr(g0)}, {vr(g0)}, {vr(u0)}"); A(f"v_mul_f32 {vr(g1)}, {vr(g1)}, {vr(u1)}")
        A(f"v_cvt_pk_bf16_f32 {vr(HOPR+i)}, {vr(g0)}, {vr(g1)}")
    for j in range(8):
        op = 10 + 4 * (j & 1)
        sel = "s58" if (j & 1) == 0 else "s59"
        dw = j >> 1
        for t in range(4):
            A(f"v_perm_b32 {vr(op+t)}, {vr(WD+8*t+4+dw)}, {vr(WD+8*t+dw)}, {sel}")
        A("s_nop 1")
        A(f"v_mfma_f32_16x16x32_bf16 {vr(ACC2+4*j,4)}, {vr(op,4)}, {vr(HOPR,4)}, 0")
    for j in range(8):
        sel = "s58" if (j & 1) == 0 else "s59"
        dw = j >> 1
        for t in range(4):
            A(f"v_perm_b32 {vr(WOP+4*j+t)}, {vr(WO+8*t+4+dw)}, {vr(WO+8*t+dw)}, {sel}")
    A("v_lshlrev_b32 v4, 17, v2"); A("v_lshl_add_u32 v4, v3, 14, v4"); A("v_lshl_add_u32 v4, v6, 5, v4")
    A("s_lshl_b32 s60, s79, 15"); A("s_lshl_b32 s61, s78, 9"); A("s_add_u32 s60, s60, s61"); A("s_lshl_b32 s61, s3, 7"); A("s_add_u32 s60, s60, s61")
    A(f"s_add_u32 s81, s60, {WS_OP}")
    for s_ in range(1, 4):
        A(f"s_add_u32 s{81+s_}, s81, {4096*s_}")
    A("v_lshlrev_b32 v2, 11, v2"); A("v_lshl_add_u32 v2, v3, 5, v2")
    A("s_lshl_b32 s60, s79, 9"); A("s_lshl_b32 s61, s78, 6"); A("s_add_u32 s60, s60, s61"); A(f"s_add_u32 s85, s60, {WS_ST}")
    A(f"s_mov_b32 s69, 0x{LOG2E:x}")
    stamp(8)
    lds_wait(F_O, 4, 8, 7, sleep=4)
    stamp(9)
    def h1loads():
        A(f"buffer_load_dwordx4 {vr(STT,4)}, v2, s[36:39], s85 offen sc1")
        A(f"buffer_load_dwordx4 {vr(STT+4,4)}, v2, s[36:39], s85 offen offset:16 sc1")
        for s_ in range(4):
            A(f"buffer_load_dwordx4 {vr(OD+8*s_,4)}, v4, s[36:39], s{81+s_} offen sc1")
            A(f"buffer_load_dwordx4 {vr(OD+8*s_+4,4)}, v4, s[36:39], s{81+s_} offen offset:16 sc1")
    if opt.get("h1pre", 1):
        def h1pre():
            A(f"buffer_load_dwordx4 {vr(STT,4)}, v2, s[36:39], s85 offen sc1")
            A(f"buffer_load_dwordx4 {vr(STT+4,4)}, v2, s[36:39], s85 offen offset:16 sc1")
        poll_loop(h1pre, list(range(STT, STT + 8)), 8, "0xffff")
    poll_loop(h1loads, list(range(STT, STT + 8)) + list(range(OD, OD + 32)), 8)
    stamp(10)
    A(f"v_max3_f32 v10, {vr(STT)}, {vr(STT+2)}, {vr(STT+4)}")
    A(f"v_max_f32 v10, v10, {vr(STT+6)}")
    A("s_nop 1")
    A(f"v_max_f32_dpp v10, v10, v10 {ROR}")
    for s_ in range(4):
        A(f"v_sub_f32 {vr(STT+2*s_)}, {vr(STT+2*s_)}, v10")
    for s_ in range(4):
        A(f"v_mul_f32 {vr(STT+2*s_)}, s69, {vr(STT+2*s_)}")
    for s_ in range(4):
        A(f"v_exp_f32 {vr(STT+2*s_)}, {vr(STT+2*s_)}")
    A("s_nop 0")
    A(f"v_mul_f32 v11, {vr(STT)}, {vr(STT+1)}")
    for s_ in range(1, 4):
        A(f"v_fmac_f32 v11, {vr(STT+2*s_)}, {vr(STT+2*s_+1)}")
    A("s_nop 1")
    A(f"v_add_f32_dpp v11, v11, v11 {ROR}")
    A("v_rcp_f32 v11, v11")
    for i in range(8):
        A(f"v_mul_f32 {vr(12+i)}, {vr(STT)}, {vr(OD+i)}")
    for s_ in range(1, 4):
        for i in range(8):
            A(f"v_fmac_f32 {vr(12+i)}, {vr(STT+2*s_)}, {vr(OD+8*s_+i)}")
    A("s_nop 1")
    for i in range(8):
        A(f"v_add_f32_dpp {vr(12+i)}, {vr(12+i)}, {vr(12+i)} {ROR}")
    for i in range(8):
        A(f"v_mul_f32 {vr(12+i)}, {vr(12+i)}, v11")
    for i in range(4):
        A(f"v_cvt_pk_bf16_f32 {vr(20+i)}, {vr(12+2*i)}, {vr(13+2*i)}")
    A("s_nop 1")
    for j in range(8):
        A(f"v_mfma_f32_16x16x32_bf16 {vr(ACC2+4*j,4)}, {vr(WOP+4*j,4)}, v[20:23], {vr(ACC2+4*j,4)}")
    A(f"v_mul_u32_u24 v3, {O_PITCH}, v5"); A("v_lshl_add_u32 v3, v6, 7, v3")
    A(f"s_mul_i32 s60, s3, {O_SLAB}"); A(f"s_add_u32 s60, s60, {L_T}"); A("v_add_u32 v3, s60, v3")
    A("v_cmp_gt_u32 vcc, 8, v5"); A("s_and_b64 exec, exec, vcc")
    A("s_nop 4")
    for j in range(8):
        A(f"ds_write_b128 v3, {vr(ACC2+4*j,4)} offset:{16*j}")
    A("s_mov_b64 exec, -1")
    A("v_lshrrev_b32 v3, 5, v0"); A("s_lshl_b32 s60, s3, 1"); A("v_add_u32 v3, s60, v3")
    A("v_and_b32 v4, 31, v0")
    A(f"v_mul_u32_u24 v8, {O_PITCH}, v3"); A("v_lshl_add_u32 v8, v4, 4, v8"); A(f"v_add_u32 v8, {L_T}, v8")
    A("v_lshlrev_b32 v3, 9, v3"); A("v_lshl_add_u32 v3, v4, 4, v3")
    A("s_lshl_b32 s61, s57, 5"); A("s_add_u32 s61, s61, s56"); A("s_lshl_b32 s61, s61, 12"); A(f"s_add_u32 s61, s61, {WS_FP}")
    A("s_waitcnt lgkmcnt(0)")
    A("s_barrier")
    for w in range(4):
        A(f"ds_read_b128 {vr(12+4*w,4)}, v8 offset:{O_SLAB*w}")
    A("s_waitcnt lgkmcnt(0)")
    for r in range(4):
        A(f"v_add_f32 {vr(12+r)}, {vr(12+r)}, {vr(16+r)}")
        A(f"v_add_f32 {vr(20+r)}, {vr(20+r)}, {vr(24+r)}")
    for r in range(4):
        A(f"v_add_f32 {vr(12+r)}, {vr(12+r)}, {vr(20+r)}")
    for r in range(4):
        A(f"v_min_u32 {vr(12+r)}, -2, {vr(12+r)}")
    A("buffer_store_dwordx4 v[12:15], v3, s[36:39], s61 offen sc1")
    stamp(11)
    A("s_cmp_lg_u32 s3, 0"); A("s_cbranch_scc1 L_Gexit")
    A("v_lshrrev_b32 v2, 3, v0"); A("v_and_b32 v3, 7, v0")
    A("v_lshlrev_b32 v4, 14, v2"); A("v_lshl_add_u32 v4, v3, 4, v4")
    A("s_lshl_b32 s60, s57, 17"); A("s_lshl_b32 s61, s78, 9"); A("s_add_u32 s60, s60, s61"); A("s_lshl_b32 s61, s79, 7"); A("s_add_u32 s60, s60, s61")
    A(f"s_add_u32 s81, s60, {WS_FP}")
    for s_ in range(1, 4):
        A(f"s_add_u32 s{81+s_}, s81, {4096*s_}")
    srd(48, "s22", "s23", 16384)
    def h2loads():
        for t in range(4):
            A(f"buffer_load_dwordx4 {vr(40+4*t,4)}, v4, s[36:39], s{81+t} offen sc1")
    poll_loop(h2loads, list(range(40, 56)), 8)
    stamp(12)
    for r in range(4):
        A(f"v_add_f32 {vr(40+r)}, {vr(40+r)}, {vr(44+r)}")
        A(f"v_add_f32 {vr(48+r)}, {vr(48+r)}, {vr(52+r)}")
    for r in range(4):
        A(f"v_add_f32 {vr(40+r)}, {vr(40+r)}, {vr(48+r)}")
    A("s_nop 1")
    for r in range(4):
        A(f"v_add_f32_dpp {vr(40+r)}, {vr(40+r)}, {vr(40+r)} {ROR}")
    xrow_reduce("v_add_f32", [40, 41, 42, 43], list(range(44, 52)))
    for r in range(1, 4):
        A(f"v_cmp_eq_u32 vcc, {r}, v2")
        A("s_nop 1")
        A(f"v_cndmask_b32 v40, v40, {vr(40+r)}, vcc")
    A("v_lshlrev_b32 v38, 16, v38")
    A("v_add_f32 v40, v40, v38")
    A("v_cvt_pk_bf16_f32 v40, v40, v40")
    A("v_lshlrev_b32 v4, 1, v0")
    A("s_mov_b64 exec, 0xffffffff")
    A("buffer_store_short v40, v4, s[48:51], s80 offen")
    A("s_mov_b64 exec, -1")
    A.label("L_Gexit")
    stamp(13)
    stamp_flush()
    A.label("L_end")
    A("s_endpgm")

    Ft = ['.section .rodata,"a"', ".p2align 6", f".amdhsa_kernel {NAME}",
          "  .amdhsa_next_free_vgpr 256", "  .amdhsa_next_free_sgpr 96", "  .amdhsa_accum_offset 256",
          "  .amdhsa_group_segment_fixed_size 0", "  .amdhsa_kernarg_size 96", "  .amdhsa_user_sgpr_count 2",
          "  .amdhsa_user_sgpr_kernarg_segment_ptr 1", "  .amdhsa_system_sgpr_workgroup_id_x 1", ".end_amdhsa_kernel"]
    return "\n".join(H + A.L + Ft) + "\n"


if __name__ == "__main__":
    out = sys.argv[1] if len(sys.argv) > 1 else "k.s"
    opt = {}
    for a in sys.argv[2:]:
        k, v = a.split("=")
        opt[k] = int(v)
    open(out, "w").write(gen(opt))
```

```python
import sys

NAME = "parallel_sum__gqa_block_cached__glu_gated_geglu__decode_kernel"

WS_P1, P1_MAT, P1_KQ, P1_B = 0x0, 0x80000, 0x20000, 0x4000
WS_ST, WS_TK, WS_OP, WS_FP, WS_DBG = 0x180000, 0x190000, 0x200000, 0x300000, 0x400000
WS_SIZE = 0x10000000
L_FLAG = 0x0
F_XN, F_P1, F_Q, F_O, F_P2, F_TK, F_CL = 0, 4, 8, 12, 16, 20, 24
L_XN, XN_PITCH = 0x100, 528
L_P1, P1_PITCH = 0x1200, 320
P1_WAVE, P1_UNIT = 8 * 320, 4 * 8 * 320
L_Q, Q_PITCH = 0x8A00, 288
L_ST = 0x9400
L_O, O_SLAB, O_PITCH = 0x9800, 8 * 528, 528
L_T = L_O + 4 * O_SLAB
LDS_BYTES = L_T + 4 * O_SLAB
SPIN_MAX = 20000
OOB = 0x7ff00000

LOG2E = 0x3FB8AA3B
SCALE = 0x3DB504F3


class Asm:
    def __init__(self):
        self.L = []
        self.uid = 0
    def __call__(self, s):
        if s == "s_mov_b64 exec, 0xffffffff":
            self.L.append("    s_mov_b32 exec_lo, -1"); self.L.append("    s_mov_b32 exec_hi, 0")
            return
        self.L.append("    " + s)
    def label(self, s):
        self.L.append(s + ":")
    def new(self, p="L"):
        self.uid += 1
        return f"{p}_{self.uid}"
    def c(self, s):
        self.L.append("    ; " + s)


def vr(a, n=1):
    return f"v{a}" if n == 1 else f"v[{a}:{a+n-1}]"


def gen(opt):
    A = Asm()
    stamps = opt.get("stamps", False)
    psleep = opt.get("psleep", 2)

    def stamp(idx):
        if not stamps:
            return
        A("s_memrealtime s[90:91]")
        A("s_waitcnt lgkmcnt(0)")
        A(f"v_writelane_b32 v9, s90, {idx}")

    def stamp_flush(role="A"):
        if not stamps:
            return
        if opt.get("dbg", 0):
            m = {"A": [(0, 1, 1), (0, 2, 0), (2, 3, 0), (3, 4, 0), (3, 5, 1), (4, 12, 0)],
                 "G": [(0, 1, 1), (0, 2, 0), (4, 6, 0), (6, 7, 0), (10, 8, 0), (11, 9, 0), (12, 10, 0), (13, 11, 0), (3, 13, 0), (14, 14, 0), (9, 15, 0)]}[role]
            A("v_mov_b32 v8, 0")
            mask = 0
            for (src, dst, inv) in m:
                A(f"v_readlane_b32 s92, v9, {src}")
                A("s_nop 3")
                if inv:
                    A("s_not_b32 s92, s92")
                A(f"v_writelane_b32 v8, s92, {dst}")
                mask |= 1 << dst
            A(f"s_mov_b64 exec, 0x{mask:x}")
            A("v_lshlrev_b32 v9, 2, v0")
            A("buffer_atomic_umax v8, v9, s[52:55], 0 offen")
            A("s_mov_b64 exec, -1")
            return
        A("s_lshl_b32 s92, s2, 4"); A("s_add_u32 s92, s92, s3"); A("s_lshl_b32 s92, s92, 6")
        A(f"s_add_u32 s92, s92, {WS_DBG}")
        A("s_mov_b64 exec, 0xffff")
        A("v_lshlrev_b32 v8, 2, v0")
        A("buffer_store_dword v9, v8, s[36:39], s92 offen")
        A("s_mov_b64 exec, -1")

    def srd(d, lo, hi, size):
        A(f"s_mov_b32 s{d}, {lo}"); A(f"s_mov_b32 s{d+1}, {hi}")
        A(f"s_mov_b32 s{d+2}, {size}"); A(f"s_mov_b32 s{d+3}, 0x00020000")

    def lds_wait(flag, count, vt, va, sleep=1):
        l = A.new("Llw"); d = A.new("Llwd")
        A.label(l)
        A(f"ds_read_b32 {vr(vt)}, {vr(va)} offset:{L_FLAG+flag}")
        A("s_waitcnt lgkmcnt(0)")
        A(f"v_readfirstlane_b32 s60, {vr(vt)}")
        A(f"s_cmp_ge_u32 s60, {count}")
        A(f"s_cbranch_scc1 {d}")
        if sleep:
            A(f"s_sleep {sleep}")
        A(f"s_branch {l}")
        A.label(d)

    def lds_signal(flag, vt, va):
        A("s_waitcnt lgkmcnt(0)")
        A("s_mov_b64 exec, 1")
        A(f"v_mov_b32 {vr(vt)}, 1")
        A(f"ds_add_u32 {vr(va)}, {vr(vt)} offset:{L_FLAG+flag}")
        A("s_mov_b64 exec, -1")

    def xrow_reduce(op, vs, ts):
        for sw in ("v_permlane16_swap_b32", "v_permlane32_swap_b32"):
            for i, v in enumerate(vs):
                A(f"v_mov_b32 {vr(ts[2*i])}, {vr(v)}")
                A(f"v_mov_b32 {vr(ts[2*i+1])}, {vr(v)}")
            A("s_nop 1")
            for i, v in enumerate(vs):
                A(f"{sw} {vr(ts[2*i])}, {vr(ts[2*i+1])}")
            A("s_nop 1")
            for i, v in enumerate(vs):
                A(f"{op} {vr(v)}, {vr(ts[2*i])}, {vr(ts[2*i+1])}")

    def row_reduce_add(vs):
        for ctl in ("quad_perm:[1,0,3,2]", "quad_perm:[2,3,0,1]", "row_half_mirror", "row_mirror"):
            if len(vs) < 3:
                A("s_nop 1")
            for v in vs:
                A(f"v_add_f32_dpp {vr(v)}, {vr(v)}, {vr(v)} {ctl} row_mask:0xf bank_mask:0xf")

    def bf16r(v, t):
        A(f"v_cvt_pk_bf16_f32 {vr(t)}, {vr(v)}, {vr(v)}")
        A(f"v_lshlrev_b32 {vr(v)}, 16, {vr(t)}")

    def sentinel_pending(regs, vt):
        A(f"v_max3_u32 {vr(vt)}, {vr(regs[0])}, {vr(regs[1])}, {vr(regs[2])}")
        rest = regs[3:]
        while len(rest) >= 2:
            A(f"v_max3_u32 {vr(vt)}, {vr(vt)}, {vr(rest[0])}, {vr(rest[1])}")
            rest = rest[2:]
        if rest:
            A(f"v_max_u32 {vr(vt)}, {vr(vt)}, {vr(rest[0])}")
        A(f"v_cmp_eq_u32 vcc, -1, {vr(vt)}")

    def poll_loop(loads, regs, vt, mask="-1"):
        l = A.new("Lpoll"); d = A.new("Lpolld"); f = A.new("Lpollf")
        A(f"s_mov_b64 exec, {mask}")
        A("s_mov_b32 s61, 0")
        A(f"s_branch {f}")
        A.label(l)
        if psleep:
            A(f"s_sleep {psleep}")
        A.label(f)
        loads()
        A("s_waitcnt vmcnt(0)")
        sentinel_pending(regs, vt)
        A("s_add_u32 s61, s61, 1")
        A(f"s_cmp_ge_u32 s61, s62")
        A(f"s_cbranch_scc1 {d}")
        A("s_and_b64 exec, exec, vcc")
        A(f"s_cbranch_scc1 {l}")
        A.label(d)
        A("s_mov_b64 exec, -1")

    H = []
    H.append(f"; @launch grid=(256,1,1) block=(512,1,1) lds={LDS_BYTES}")
    H.append('.amdgcn_target "amdgcn-amd-amdhsa--gfx950"')
    H.append(".text"); H.append(f".globl {NAME}"); H.append(".p2align 8"); H.append(f".type {NAME},@function")
    H.append(f"{NAME}:")

    A("s_cmp_ge_u32 s2, 256")
    A("s_cbranch_scc1 L_end")
    A("s_load_dwordx16 s[4:19], s[0:1], 0")
    A("s_load_dwordx8 s[20:27], s[0:1], 64")
    A("v_lshrrev_b32 v1, 6, v0")
    A("v_and_b32 v0, 63, v0")
    A("v_mov_b32 v9, 0")
    A("v_readfirstlane_b32 s3, v1")
    A("v_lshlrev_b32 v3, 2, v0")
    A("s_lshr_b32 s56, s2, 3")
    A("s_and_b32 s57, s2, 7")
    A(f"s_mov_b32 s62, {SPIN_MAX}")
    A("s_mov_b32 s58, 0x05040100")
    A("s_mov_b32 s59, 0x07060302")
    A("s_mul_i32 s63, s56, 7"); A("s_add_u32 s63, s63, s57"); A("s_add_u32 s64, s56, 224")
    A("s_cmp_eq_u32 s57, 7"); A("s_cselect_b32 s63, s64, s63")
    A("s_and_b32 s64, s63, 3")
    A("s_lshr_b32 s65, s63, 2")
    A("s_lshl_b32 s66, s64, 17"); A("s_lshl_b32 s60, s65, 8"); A("s_add_u32 s66, s66, s60")
    A("v_and_b32 v5, 15, v0"); A("v_lshrrev_b32 v6, 4, v0")
    A("v_mov_b32 v7, 0")
    A("s_cmp_lg_u32 s3, 4")
    A("s_cbranch_scc1 L_noz")
    A("ds_write_b32 v3, v9")
    A(f"v_mov_b32 v8, {4*(3+opt.get('nx',2))}")
    A(f"ds_write_b32 v7, v8 offset:{L_FLAG+F_TK}")
    A.label("L_noz")
    A("s_waitcnt lgkmcnt(0)")
    if opt.get("earlybar", 1):
        A("s_barrier")
    srd(36, "s26", "s27", WS_SIZE)
    stamp(0)
    A("s_cmp_lt_u32 s3, 4")
    A("s_cbranch_scc1 L_G")

    vK, vV, vM, vL = 1, 2, 3, 4
    T = [5, 6, 7, 8]
    S, P, VOP, Q, O, BUF = 10, 14, 16, 24, 40, 72
    NB, NX = 3, opt.get("nx", 2)
    TK = 84
    A.c("---------------- attention waves")
    A("s_setprio 3")
    for i in range(4):
        A(f"v_mov_b32 {vr(O+i)}, -1")
    A("s_sub_u32 s64, s3, 4")
    A("v_lshlrev_b32 v2, 14, v6"); A("v_lshl_add_u32 v2, v5, 4, v2")
    A("v_lshlrev_b32 v1, 4, v0")
    A("s_cmp_eq_u32 s64, 3"); A("s_cbranch_scc1 L_clrst")
    A("s_lshl_b32 s60, s64, 19"); A("s_add_u32 s70, s66, s60"); A(f"s_add_u32 s71, s70, {4*P1_B}")
    A(f"buffer_store_dwordx4 {vr(O,4)}, v2, s[36:39], s70 offen sc1")
    A(f"buffer_store_dwordx4 {vr(O,4)}, v2, s[36:39], s71 offen sc1")
    A("s_branch L_clr2")
    A.label("L_clrst")
    A("s_lshl_b32 s60, s56, 9"); A("s_lshl_b32 s61, s57, 3"); A("s_add_u32 s60, s60, s61"); A(f"s_add_u32 s60, s60, {WS_ST}")
    A("v_lshlrev_b32 v2, 6, v0")
    A("s_mov_b64 exec, 0xff")
    A(f"buffer_store_dwordx2 {vr(O,2)}, v2, s[36:39], s60 offen sc1")
    A("s_mov_b64 exec, -1")
    A.label("L_clr2")
    A("s_lshl_b32 s61, s64, 10")
    A("s_lshl_b32 s60, s2, 12"); A("s_add_u32 s60, s60, s61"); A(f"s_add_u32 s71, s60, {WS_OP}")
    A(f"buffer_store_dwordx4 {vr(O,4)}, v1, s[36:39], s71 offen sc1")
    A("s_lshl_b32 s60, s57, 5"); A("s_add_u32 s60, s60, s56"); A("s_lshl_b32 s60, s60, 12"); A("s_add_u32 s60, s60, s61"); A(f"s_add_u32 s72, s60, {WS_FP}")
    A(f"buffer_store_dwordx4 {vr(O,4)}, v1, s[36:39], s72 offen sc1")
    srd(52, "s24", "s25", 256)
    A("s_and_b32 s73, s2, 3"); A("s_lshl_b32 s73, s73, 6")
    A("s_lshl_b32 s63, s56, 21")
    A("s_add_u32 s28, s6, s63"); A("s_addc_u32 s29, s7, 0"); A("s_mov_b32 s30, 0x200000"); A("s_mov_b32 s31, 0x00020000")
    A("s_add_u32 s32, s8, s63"); A("s_addc_u32 s33, s9, 0"); A("s_mov_b32 s34, 0x200000"); A("s_mov_b32 s35, 0x00020000")
    A(f"v_lshlrev_b32 {vr(vK)}, 8, v5"); A(f"v_lshl_add_u32 {vr(vK)}, v6, 4, {vr(vK)}")
    A(f"v_lshlrev_b32 {vr(vV)}, 10, v6"); A(f"v_lshl_add_u32 {vr(vV)}, v5, 4, {vr(vV)}")
    A("s_lshl_b32 s65, s57, 18")
    A("v_mov_b32 v22, 1"); A("v_mov_b32 v21, 0")
    if not opt.get("earlybar", 1):
        A("s_barrier")
    def tk_req():
        A("s_mov_b64 exec, 1")
        A(f"ds_add_rtn_u32 v23, v21, v22 offset:{L_FLAG+F_TK}")
        A("s_mov_b64 exec, -1")
    A("s_waitcnt vmcnt(0)")
    A("s_mov_b64 exec, 1")
    A(f"ds_add_rtn_u32 v20, v21, v22 offset:{L_FLAG+F_CL}")
    A(f"ds_add_rtn_u32 v23, v21, v22 offset:{L_FLAG+F_TK}")
    A("s_waitcnt lgkmcnt(0)")
    A("v_readfirstlane_b32 s60, v20")
    A("s_cmp_lg_u32 s60, 3"); A("s_cbranch_scc1 L_noarr")
    A("buffer_atomic_add v22, v21, s[52:55], s73 offen")
    A.label("L_noarr")
    A("s_mov_b64 exec, -1")
    A("s_setprio 0")
    stamp(5)

    def a_issue(b, first=False):
        sk = A.new("Lnoiss")
        if first:
            A(f"s_add_u32 s{TK+b}, s64, {4*b}")
            A(f"s_lshl_b32 s68, s{TK+b}, 12"); A("s_add_u32 s68, s68, s65")
        else:
            A("s_waitcnt lgkmcnt(0)")
            A(f"v_readfirstlane_b32 s{TK+b}, v23")
            tk_req()
            A(f"s_lshl_b32 s68, s{TK+b}, 12"); A("s_add_u32 s68, s68, s65")
            A(f"s_cmp_ge_u32 s{TK+b}, 64")
            A(f"s_cbranch_scc1 {sk}")
        for j in range(4):
            A(f"buffer_load_dwordx4 {vr(BUF+32*b+4*j,4)}, {vr(vK)}, s[28:31], s68 offen offset:{64*j} nt")
        for j in range(4):
            A(f"buffer_load_dwordx4 {vr(BUF+32*b+16+4*j,4)}, {vr(vV)}, s[32:35], s68 offen offset:{256*j} nt")
        A.label(sk)

    def a_wait(b, base):
        if b >= NB:
            d = A.new("Lw")
            A(f"s_waitcnt vmcnt({base + 8*(NB+NX-1-b) + 8*NB})")
            A(f"s_cmp_lt_u32 s{TK+NB-1}, 64"); A(f"s_cbranch_scc1 {d}")
            A(f"s_waitcnt vmcnt(0)")
            A.label(d)
            return
        d = A.new("Lw")
        A(f"s_waitcnt vmcnt({base+16})")
        A(f"s_cmp_lt_u32 s{TK+(b+2)%3}, 64"); A(f"s_cbranch_scc1 {d}")
        A(f"s_waitcnt vmcnt({base+8})")
        A(f"s_cmp_lt_u32 s{TK+(b+1)%3}, 64"); A(f"s_cbranch_scc1 {d}")
        A(f"s_waitcnt vmcnt({base})")
        A.label(d)

    def a_proc(b):
        kb = BUF + 32 * b; vb = kb + 16
        a_wait(b, 4)
        A(f"v_mfma_f32_16x16x32_bf16 {vr(S,4)}, {vr(kb,4)}, {vr(Q,4)}, 0")
        for j in range(1, 4):
            A(f"v_mfma_f32_16x16x32_bf16 {vr(S,4)}, {vr(kb+4*j,4)}, {vr(Q+4*j,4)}, {vr(S,4)}")
        A("s_nop 7")
        t0, t1, t2, t3 = T
        for rnd in range(2):
            A(f"v_cvt_pk_bf16_f32 {vr(t0)}, {vr(S)}, {vr(S+1)}")
            A(f"v_cvt_pk_bf16_f32 {vr(t1)}, {vr(S+2)}, {vr(S+3)}")
            A(f"v_lshlrev_b32 {vr(S)}, 16, {vr(t0)}")
            A(f"v_and_b32 {vr(S+1)}, 0xffff0000, {vr(t0)}")
            A(f"v_lshlrev_b32 {vr(S+2)}, 16, {vr(t1)}")
            A(f"v_and_b32 {vr(S+3)}, 0xffff0000, {vr(t1)}")
            if rnd == 0:
                for r in range(4):
                    A(f"v_mul_f32 {vr(S+r)}, s70, {vr(S+r)}")
        A(f"v_max3_f32 {vr(t2)}, {vr(S)}, {vr(S+1)}, {vr(S+2)}")
        A(f"v_max3_f32 {vr(t2)}, {vr(t2)}, {vr(S+3)}, {vr(vM)}")
        xrow_reduce("v_max_f32", [t2], [t0, t1])
        A(f"v_sub_f32 {vr(t3)}, {vr(vM)}, {vr(t2)}")
        A(f"v_mul_f32 {vr(t3)}, s69, {vr(t3)}")
        A(f"v_exp_f32 {vr(t3)}, {vr(t3)}")
        A(f"v_mov_b32 {vr(vM)}, {vr(t2)}")
        A(f"v_mul_f32 {vr(t2)}, s69, {vr(t2)}")
        for r in range(4):
            A(f"v_fma_f32 {vr(S+r)}, {vr(S+r)}, s69, -{vr(t2)}")
        for r in range(4):
            A(f"v_exp_f32 {vr(S+r)}, {vr(S+r)}")
        A(f"v_mul_f32 {vr(vL)}, {vr(vL)}, {vr(t3)}")
        A(f"v_add_f32 {vr(t0)}, {vr(S)}, {vr(S+1)}")
        A(f"v_add_f32 {vr(t1)}, {vr(S+2)}, {vr(S+3)}")
        A(f"v_cvt_pk_bf16_f32 {vr(P)}, {vr(S)}, {vr(S+1)}")
        A(f"v_cvt_pk_bf16_f32 {vr(P+1)}, {vr(S+2)}, {vr(S+3)}")
        A(f"v_add_f32 {vr(vL)}, {vr(vL)}, {vr(t0)}")
        A(f"v_add_f32 {vr(vL)}, {vr(vL)}, {vr(t1)}")
        sk = A.new("Lnors")
        A(f"v_cmp_neq_f32 vcc, 1.0, {vr(t3)}")
        A("s_cbranch_vccz " + sk)
        for i in range(32):
            A(f"v_mul_f32 {vr(O+i)}, {vr(O+i)}, {vr(t3)}")
        A.label(sk)
        a_wait(b, 0)
        for j in range(8):
            op = VOP + 2 * (j & 1)
            sel = "s58" if (j & 1) == 0 else "s59"
            dw = j >> 1
            A(f"v_perm_b32 {vr(op)}, {vr(vb+4+dw)}, {vr(vb+dw)}, {sel}")
            A(f"v_perm_b32 {vr(op+1)}, {vr(vb+12+dw)}, {vr(vb+8+dw)}, {sel}")
            A("s_nop 1")
            A(f"v_mfma_f32_16x16x16_bf16 {vr(O+4*j,4)}, {vr(op,2)}, {vr(P,2)}, {vr(O+4*j,4)}")

    for b in range(NB + NX):
        a_issue(b, True)
    for i in range(32):
        A(f"v_mov_b32 {vr(O+i)}, 0")
    A(f"v_mov_b32 {vr(vM)}, 0xff800000")
    A(f"v_mov_b32 {vr(vL)}, 0")
    A("s_mov_b32 s67, 1")
    stamp(1)
    lds_wait(F_Q, 4, 8, 7, sleep=2)
    stamp(2)
    A("v_and_b32 v7, 7, v0"); A(f"v_mul_u32_u24 v7, {Q_PITCH}, v7"); A("v_lshl_add_u32 v7, v6, 4, v7")
    for j in range(4):
        A(f"ds_read_b128 {vr(Q+4*j,4)}, v7 offset:{L_Q+64*j}")
    A(f"s_mov_b32 s69, 0x{LOG2E:x}")
    A(f"s_mov_b32 s70, 0x{SCALE:x}")
    A("s_waitcnt lgkmcnt(0)")
    A.label("L_Aloop")
    for b in range(NB):
        A(f"s_cmp_ge_u32 s{TK+b}, 64")
        A("s_cbranch_scc1 L_Adone")
        a_proc(b)
        a_issue(b)
    A("s_cmp_eq_u32 s67, 0")
    A("s_cbranch_scc1 L_Aloop")
    A("s_mov_b32 s67, 0")
    for b in range(NB, NB + NX):
        a_proc(b)
    A("s_branch L_Aloop")
    A.label("L_Adone")
    A("s_setprio 3")
    stamp(3)
    xrow_reduce("v_add_f32", [vL], [T[0], T[1]])
    A("v_and_b32 v5, 15, v0"); A("v_lshrrev_b32 v6, 4, v0")
    A(f"v_mul_u32_u24 v7, {O_PITCH}, v5"); A("v_lshl_add_u32 v7, v6, 7, v7")
    A(f"s_mul_i32 s60, s64, {O_SLAB}")
    A("v_add_u32 v7, s60, v7")
    A("s_lshl_b32 s60, s64, 3")
    A("v_lshlrev_b32 v8, 5, v5"); A("v_add_u32 v8, s60, v8")
    A("v_cmp_gt_u32 vcc, 8, v5")
    A("s_and_b64 exec, exec, vcc")
    for j in range(8):
        A(f"ds_write_b128 v7, {vr(O+4*j,4)} offset:{L_O+16*j}")
    A(f"v_mov_b32 {vr(S)}, {vr(vM)}"); A(f"v_mov_b32 {vr(S+1)}, {vr(vL)}")
    A(f"ds_write_b64 v8, {vr(S,2)} offset:{L_ST}")
    A("s_mov_b64 exec, -1")
    A("v_mov_b32 v7, 0")
    lds_signal(F_O, 8, 7)
    A("v_lshrrev_b32 v5, 5, v0"); A("s_lshl_b32 s60, s64, 1"); A("v_add_u32 v5, s60, v5")
    A("v_and_b32 v6, 31, v0")
    A(f"v_mul_u32_u24 v20, {O_PITCH}, v5"); A("v_lshl_add_u32 v20, v6, 4, v20")
    A("v_lshlrev_b32 v21, 5, v5")
    A("v_lshlrev_b32 v23, 6, v5")
    A("v_lshlrev_b32 v22, 9, v5"); A("v_lshl_add_u32 v22, v6, 4, v22")
    A("s_lshl_b32 s71, s2, 12"); A(f"s_add_u32 s71, s71, {WS_OP}")
    A("s_lshl_b32 s72, s56, 9"); A("s_lshl_b32 s61, s57, 3"); A("s_add_u32 s72, s72, s61"); A(f"s_add_u32 s72, s72, {WS_ST}")
    lds_wait(F_O, 4, 8, 7, sleep=0)
    for i in range(2):
        A(f"ds_read_b128 {vr(Q+4*i,4)}, v21 offset:{L_ST+16*i}")
    for a in range(4):
        A(f"ds_read_b128 {vr(BUF+4*a,4)}, v20 offset:{L_O+O_SLAB*a}")
    A("s_waitcnt lgkmcnt(4)")
    A(f"v_max3_f32 v10, {vr(Q)}, {vr(Q+2)}, {vr(Q+4)}")
    A(f"v_max_f32 v10, v10, {vr(Q+6)}")
    for a in range(4):
        A(f"v_sub_f32 {vr(Q+2*a)}, {vr(Q+2*a)}, v10")
    for a in range(4):
        A(f"v_mul_f32 {vr(Q+2*a)}, s69, {vr(Q+2*a)}")
    for a in range(4):
        A(f"v_exp_f32 {vr(Q+2*a)}, {vr(Q+2*a)}")
    A("s_nop 0")
    A(f"v_mul_f32 v11, {vr(Q)}, {vr(Q+1)}")
    for a in range(1, 4):
        A(f"v_fmac_f32 v11, {vr(Q+2*a)}, {vr(Q+2*a+1)}")
    A("s_waitcnt lgkmcnt(0)")
    for r in range(4):
        A(f"v_mul_f32 {vr(O+r)}, {vr(Q)}, {vr(BUF+r)}")
    for a in range(1, 4):
        for r in range(4):
            A(f"v_fmac_f32 {vr(O+r)}, {vr(Q+2*a)}, {vr(BUF+4*a+r)}")
    for r in range(4):
        A(f"v_min_u32 {vr(O+r)}, -2, {vr(O+r)}")
    A("v_min_u32 v10, -2, v10"); A("v_min_u32 v11, -2, v11")
    A(f"buffer_store_dwordx4 {vr(O,4)}, v22, s[36:39], s71 offen sc1")
    A("v_cmp_eq_u32 vcc, 0, v6")
    A("s_and_b64 exec, exec, vcc")
    A("buffer_store_dwordx2 v[10:11], v23, s[36:39], s72 offen sc1")
    A("s_mov_b64 exec, -1")
    A.label("L_Aexit")
    stamp(4)
    stamp_flush()
    A("s_endpgm")

    A.label("L_G")
    A.c("---------------- GEMV / control waves")
    X, XS, XOP, WQ, WG, WU, TMP = 10, 26, 30, 40, 72, 104, 136
    srd(32, "s4", "s5", 16384)
    A("v_lshlrev_b32 v1, 5, v0")
    A("s_lshl_b32 s60, s3, 12")
    for r in range(2):
        for hlf in range(2):
            A(f"buffer_load_dwordx4 {vr(X+8*r+4*hlf,4)}, v1, s[32:35], s60 offen offset:{2048*r+16*hlf}")
    A("v_lshlrev_b32 v2, 3, v0")
    A("s_lshl_b32 s61, s64, 9"); A("s_add_u32 s60, s60, s61")
    for r in range(2):
        A(f"buffer_load_dwordx2 {vr(XS+2*r,2)}, v2, s[32:35], s60 offen offset:{2048*r}")
    srd(28, "s10", "s11", 0x800000)
    A("s_lshl_b32 s67, s64, 2"); A("s_add_u32 s67, s67, s3"); A("s_lshl_b32 s67, s67, 6")
    A("s_lshl_b32 s61, s65, 7")
    A("s_lshl_b32 s68, s67, 13"); A("s_add_u32 s68, s68, s61")
    A("v_lshlrev_b32 v3, 16, v6"); A("v_lshl_add_u32 v3, v5, 3, v3")

    def w_issue(base, v, sd, pitch):
        for kb in range(2):
            for i in range(8):
                A(f"buffer_load_dwordx2 {vr(base+16*kb+2*i,2)}, {v}, s[{sd}:{sd+3}], s68 offen nt")
                if not (kb == 1 and i == 7):
                    A(f"s_add_u32 s68, s68, {pitch*(25 if i == 7 else 1)}")
    w_issue(WQ, "v3", 28, 8192)
    touch = opt.get("touch", 0)
    if touch:
        A("s_cmp_eq_u32 s3, 1"); A("s_cselect_b32 s40, s18, s16"); A("s_cselect_b32 s41, s19, s17")
        A("s_cmp_eq_u32 s3, 2"); A("s_cselect_b32 s40, s12, s40"); A("s_cselect_b32 s41, s13, s41")
        A("s_cmp_eq_u32 s3, 3"); A("s_cselect_b32 s40, s20, s40"); A("s_cselect_b32 s41, s21, s41")
        A("s_mov_b32 s42, 0x700000"); A("s_mov_b32 s43, 0x00020000")
        A("s_cmp_eq_u32 s3, 2"); A("s_cselect_b32 s42, 0x800000, s42")
        A(f"s_mul_i32 s60, s64, {256*7168}"); A("s_add_u32 s60, s60, s61")
        A("s_lshl_b32 s69, s56, 18")
        A(f"s_mul_i32 s70, s56, {112*2048}")
        A("s_cmp_eq_u32 s3, 3"); A("s_cselect_b32 s69, s70, s69")
        A("s_lshl_b32 s70, s57, 8"); A("s_add_u32 s69, s69, s70")
        A("s_cmp_lt_u32 s3, 2"); A("s_cselect_b32 s60, s60, s69")
        A("s_movk_i32 s70, 8192"); A("s_cselect_b32 s70, 57344, s70")
        A("v_mul_lo_u32 v4, v0, s70")
        A("s_mov_b64 exec, 0xffffffff")
        A("buffer_load_dword v39, v4, s[40:43], s60 offen")
        A("s_mov_b64 exec, -1")
    if not opt.get("earlybar", 1):
        A("s_barrier")
    stamp(1)
    SM = [TMP, TMP + 1]; SQ = [TMP + 2, TMP + 3]; TT = list(range(TMP + 4, TMP + 12))
    A("s_mov_b32 s60, 0x3f803f80")
    for i in range(4):
        A(f"v_mov_b32 {vr(TMP+i)}, 0")
    A(f"s_waitcnt vmcnt({18+touch})")
    for i in range(8):
        for r in range(2):
            A(f"v_dot2c_f32_bf16 {vr(SM[r])}, s60, {vr(X+8*r+i)}")
            A(f"v_dot2c_f32_bf16 {vr(SQ[r])}, {vr(X+8*r+i)}, {vr(X+8*r+i)}")
    A("s_nop 2")
    row_reduce_add(SM + SQ)
    xrow_reduce("v_add_f32", SM + SQ, TT)
    for r in range(2):
        A(f"v_mul_f32 {vr(SM[r])}, 0x3a800000, {vr(SM[r])}")
        A(f"v_mul_f32 {vr(SQ[r])}, 0x3a800000, {vr(SQ[r])}")
    for r in range(2):
        A(f"v_fma_f32 {vr(SQ[r])}, -{vr(SM[r])}, {vr(SM[r])}, {vr(SQ[r])}")
        A(f"v_max_f32 {vr(SQ[r])}, 0, {vr(SQ[r])}")
    for r in range(2):
        bf16r(SQ[r], TT[r])
    for r in range(2):
        A(f"v_add_f32 {vr(SQ[r])}, 0x3727c5ac, {vr(SQ[r])}")
    for r in range(2):
        bf16r(SQ[r], TT[r])
    for r in range(2):
        A(f"v_sqrt_f32 {vr(SQ[r])}, {vr(SQ[r])}")
    for r in range(2):
        bf16r(SM[r], TT[2 + r])
    for r in range(2):
        bf16r(SQ[r], TT[r])
    for r in range(2):
        A(f"v_rcp_f32 {vr(SQ[r])}, {vr(SQ[r])}")
    A(f"s_waitcnt vmcnt({16+touch})")
    for r in range(2):
        for i in range(2):
            a, b2, t = TT[0], TT[1], TT[2]
            src = XS + 2 * r + i
            A(f"v_lshlrev_b32 {vr(a)}, 16, {vr(src)}")
            A(f"v_and_b32 {vr(b2)}, 0xffff0000, {vr(src)}")
            A(f"v_sub_f32 {vr(a)}, {vr(a)}, {vr(SM[r])}")
            A(f"v_sub_f32 {vr(b2)}, {vr(b2)}, {vr(SM[r])}")
            A(f"v_cvt_pk_bf16_f32 {vr(t)}, {vr(a)}, {vr(b2)}")
            A(f"v_lshlrev_b32 {vr(a)}, 16, {vr(t)}")
            A(f"v_and_b32 {vr(b2)}, 0xffff0000, {vr(t)}")
            A(f"v_mul_f32 {vr(a)}, {vr(a)}, {vr(SQ[r])}")
            A(f"v_mul_f32 {vr(b2)}, {vr(b2)}, {vr(SQ[r])}")
            A(f"v_cvt_pk_bf16_f32 {vr(src)}, {vr(a)}, {vr(b2)}")
    A(f"s_mul_i32 s60, s3, {2*XN_PITCH}")
    A("v_add_u32 v2, s60, v2")
    for r in range(2):
        A(f"ds_write_b64 v2, {vr(XS+2*r,2)} offset:{L_XN+XN_PITCH*r}")
    lds_signal(F_XN, 8, 7)
    stamp(2)
    A("v_and_b32 v3, 7, v0"); A(f"v_mul_u32_u24 v3, {XN_PITCH}, v3"); A("v_lshl_add_u32 v3, v6, 4, v3")
    A("s_lshl_b32 s60, s3, 7"); A("v_add_u32 v3, s60, v3")
    A(f"v_mul_u32_u24 v2, {P1_PITCH}, v5"); A("v_lshl_add_u32 v2, v6, 4, v2")
    A(f"s_mul_i32 s60, s3, {P1_WAVE}"); A("v_add_u32 v2, s60, v2")
    A("v_cmp_gt_u32 s[74:75], 8, v5")
    A("v_and_b32 v4, 1, v6"); A("s_lshl_b32 s60, s3, 1"); A("v_add_u32 v4, s60, v4")
    A(f"v_mul_u32_u24 v1, {P1_PITCH}, v4"); A("v_lshl_add_u32 v1, v5, 2, v1")
    A("v_lshrrev_b32 v8, 5, v0")
    A(f"v_mul_u32_u24 v38, {P1_UNIT}, v8"); A("v_add_u32 v1, v1, v38")
    A(f"v_add_u32 v1, {L_P1}, v1")
    A("v_lshlrev_b32 v4, 14, v4"); A("v_lshl_add_u32 v4, v5, 4, v4"); A("v_lshl_add_u32 v4, v8, 19, v4")
    lds_wait(F_XN, 4, 8, 7, sleep=0)
    for kb in range(2):
        A(f"ds_read_b128 {vr(XOP+4*kb,4)}, v3 offset:{L_XN+64*kb}")

    def unit_mfma(wbase, acc, opt_, waits):
        for kb in range(2):
            A(f"s_waitcnt vmcnt({waits[kb]}) lgkmcnt(0)")
            wb = wbase + 16 * kb
            for j in range(4):
                op = opt_ + 4 * (j & 1)
                sel = "s58" if (j & 1) == 0 else "s59"
                dw = j >> 1
                for t in range(4):
                    A(f"v_perm_b32 {vr(op+t)}, {vr(wb+4*t+2+dw)}, {vr(wb+4*t+dw)}, {sel}")
                A("s_nop 1")
                c = "0" if kb == 0 else vr(acc + 4 * j, 4)
                A(f"v_mfma_f32_16x16x32_bf16 {vr(acc+4*j,4)}, {vr(op,4)}, {vr(XOP+4*kb,4)}, {c}")

    def unit_write(acc, unit):
        A("s_mov_b64 exec, s[74:75]")
        for j in range(4):
            A(f"ds_write_b128 v2, {vr(acc+4*j,4)} offset:{L_P1+P1_UNIT*unit+64*j}")
        A("s_mov_b64 exec, -1")

    def unit_reduce(unit0, R, mask, soff):
        A(f"s_mov_b64 exec, {mask}")
        for w in range(4):
            off = (P1_UNIT * unit0 + P1_WAVE * w) // 4
            A(f"v_add_u32 v8, {P1_UNIT*unit0 + P1_WAVE*w}, v1")
            A(f"ds_read2_b32 {vr(R+4*w,2)}, v8 offset0:0 offset1:16")
            A(f"ds_read2_b32 {vr(R+4*w+2,2)}, v8 offset0:32 offset1:48")
        A("s_waitcnt lgkmcnt(0)")
        for e in range(4):
            A(f"v_add_f32 {vr(R+e)}, {vr(R+e)}, {vr(R+4+e)}")
            A(f"v_add_f32 {vr(R+8+e)}, {vr(R+8+e)}, {vr(R+12+e)}")
        for e in range(4):
            A(f"v_add_f32 {vr(R+e)}, {vr(R+e)}, {vr(R+8+e)}")
        for e in range(4):
            A(f"v_min_u32 {vr(R+e)}, -2, {vr(R+e)}")
        A(f"buffer_store_dwordx4 {vr(R,4)}, v4, s[36:39], {soff} offen sc1")
        A("s_mov_b64 exec, -1")

    srd(52, "s24", "s25", 256)
    A("v_lshlrev_b32 v29, 2, v0")
    A("s_mov_b32 s72, 0x00010001"); A("s_mov_b32 s73, 0x00010001")
    unit_mfma(WQ, X, TMP, [8+touch, touch])
    A("s_mov_b64 exec, s[72:73]")
    A("buffer_load_dword v28, v29, s[52:55], 0 offen sc1")
    A("s_mov_b64 exec, -1")
    stamp(3)
    A("s_nop 7")
    unit_write(X, 0)
    lds_signal(F_P1, 8, 7)
    lds_wait(F_P1, 4, 8, 7, sleep=0)
    lds_wait(F_CL, 4, 8, 7, sleep=0)
    unit_reduce(0, WQ, "0xffffffff", "s66")
    stamp(4)
    A("s_lshr_b32 s60, s56, 2"); A("s_lshl_b32 s60, s60, 14")
    A("s_and_b32 s61, s56, 3"); A("s_lshl_b32 s61, s61, 12"); A("s_add_u32 s60, s60, s61")
    A("s_lshl_b32 s61, s3, 10"); A("s_add_u32 s81, s60, s61")
    for k in range(1, 4):
        A(f"s_add_u32 s{81+k}, s81, {P1_KQ*k}")
    A("v_lshlrev_b32 v26, 4, v0")
    A("v_lshrrev_b32 v3, 5, v0"); A("s_lshl_b32 s60, s3, 1"); A("v_add_u32 v3, s60, v3")
    A(f"v_mul_u32_u24 v3, {Q_PITCH}, v3"); A("v_and_b32 v27, 31, v0"); A("v_lshl_add_u32 v3, v27, 3, v3")
    A("s_mov_b32 s61, 0")
    A("s_waitcnt vmcnt(1)")
    A("s_mov_b64 exec, s[72:73]")
    A.label("L_cert1")
    A("v_cmp_ne_u32 vcc, 64, v28")
    A("s_add_u32 s61, s61, 1")
    A("s_cmp_ge_u32 s61, s62"); A("s_cbranch_scc1 L_cert1d")
    A("s_cbranch_vccz L_cert1d")
    A("buffer_load_dword v28, v29, s[52:55], 0 offen sc1")
    A("s_waitcnt vmcnt(0)")
    A("s_branch L_cert1")
    A.label("L_cert1d")
    A("s_mov_b64 exec, -1")
    stamp(14)
    def qloads():
        for k in range(4):
            A(f"buffer_load_dwordx4 {vr(10+4*k,4)}, v26, s[36:39], s{81+k} offen sc1")
    poll_loop(qloads, list(range(10, 26)), 8)
    for e in range(4):
        A(f"v_add_f32 {vr(10+e)}, {vr(10+e)}, {vr(14+e)}")
        A(f"v_add_f32 {vr(18+e)}, {vr(18+e)}, {vr(22+e)}")
    for e in range(4):
        A(f"v_add_f32 {vr(10+e)}, {vr(10+e)}, {vr(18+e)}")
    A("v_cvt_pk_bf16_f32 v10, v10, v11"); A("v_cvt_pk_bf16_f32 v11, v12, v13")
    A(f"ds_write_b64 v3, v[10:11] offset:{L_Q}")
    lds_signal(F_Q, 8, 7)
    stamp(6)
    srd(40, "s16", "s17", 0x700000)
    srd(44, "s18", "s19", 0x700000)
    A("v_mul_u32_u24 v3, 57344, v6"); A("v_lshl_add_u32 v3, v5, 3, v3")
    A("s_lshl_b32 s61, s65, 7"); A("s_mul_i32 s69, s67, 7168"); A("s_add_u32 s69, s69, s61")
    A("s_cmp_lt_u32 s65, 56"); A(f"s_cselect_b32 s69, s69, {OOB}")
    A("s_mov_b32 s68, s69")
    w_issue(WG, "v3", 40, 7168)
    A("s_mov_b32 s68, s69")
    w_issue(WU, "v3", 44, 7168)
    unit_mfma(WG, TMP, X, [24, 16])
    unit_mfma(WU, TMP + 16, X, [8, 0])
    stamp(15)
    A("s_nop 7")
    unit_write(TMP, 1)
    unit_write(TMP + 16, 2)
    lds_signal(F_P2, 8, 7)
    A(f"s_add_u32 s68, s66, {P1_MAT}")
    lds_wait(F_P2, 4, 8, 7, sleep=0)
    unit_reduce(1, WQ + 16, "-1", "s68")
    stamp(5)
    WO, WD, WOP, OD, STT, ACC2, GU = 40, 72, 104, 72, 26, 136, 104
    srd(40, "s12", "s13", 0x800000)
    srd(44, "s20", "s21", 0x700000)
    for i in range(32):
        A(f"v_mov_b32 {vr(WD+i)}, 0")
    for i in range(32):
        A(f"v_mov_b32 {vr(GU+i)}, 0")
    A("v_lshlrev_b32 v2, 14, v6"); A("v_lshl_add_u32 v2, v5, 4, v2")
    A("s_mul_i32 s60, s56, 112"); A("s_lshl_b32 s61, s3, 5"); A("s_add_u32 s74, s60, s61")
    A("s_lshl_b32 s60, s74, 11"); A("s_lshl_b32 s61, s57, 8"); A("s_add_u32 s60, s60, s61")
    A("s_cmp_eq_u32 s3, 3")
    A("s_cselect_b32 s77, 0, -1"); A("s_mov_b32 s76, -1")
    A("s_mov_b64 exec, s[76:77]")
    for i in range(8):
        A(f"buffer_load_dwordx4 {vr(WD+4*i,4)}, v2, s[44:47], s60 offen offset:{2048*(i&1)} nt")
        if i & 1:
            A("s_add_u32 s60, s60, 4096")
    A("s_mov_b64 exec, -1")
    A("v_lshlrev_b32 v3, 12, v6"); A("v_lshl_add_u32 v3, v5, 4, v3")
    A("s_lshl_b32 s60, s56, 2"); A("s_add_u32 s60, s60, s3"); A("s_lshl_b32 s60, s60, 16"); A("s_add_u32 s60, s60, s61")
    for i4 in range(4):
        for hi in range(2):
            i = i4 + 4 * hi
            A(f"buffer_load_dwordx4 {vr(WO+4*i,4)}, v3, s[40:43], s60 offen offset:{2048*hi} nt")
        A("s_add_u32 s60, s60, 16384")
    A("s_and_b32 s78, s56, 7"); A("s_lshr_b32 s79, s56, 3")
    A("s_lshl_b32 s80, s78, 11"); A("s_lshl_b32 s60, s57, 8"); A("s_add_u32 s80, s80, s60"); A("s_lshl_b32 s60, s79, 6"); A("s_add_u32 s80, s80, s60")
    A("v_lshlrev_b32 v4, 1, v0")
    A("buffer_load_ushort v38, v4, s[32:35], s80 offen")
    A("v_and_b32 v2, 7, v0"); A("v_bfe_u32 v3, v0, 3, 1")
    A("v_lshlrev_b32 v1, 14, v2"); A("v_lshl_add_u32 v1, v3, 18, v1"); A("v_lshl_add_u32 v1, v6, 5, v1")
    A("s_lshl_b32 s60, s74, 2")
    for m in range(2):
        for k in range(2):
            A(f"s_add_u32 s{81+2*m+k}, s60, {P1_MAT*(m+1) + P1_KQ*k}")
    def guloads():
        for m in range(2):
            for k in range(2):
                for h in range(2):
                    A(f"buffer_load_dwordx4 {vr(GU+16*m+8*k+4*h,4)}, v1, s[36:39], s{81+2*m+k} offen offset:{16*h} sc1")
    poll_loop(guloads, list(range(GU, GU + 32)), 8, "s[76:77]")
    stamp(7)
    ROR = "row_ror:8 row_mask:0xf bank_mask:0xf"
    for m in range(2):
        for i in range(8):
            A(f"v_add_f32 {vr(GU+16*m+i)}, {vr(GU+16*m+i)}, {vr(GU+16*m+8+i)}")
    for m in range(2):
        for i in range(8):
            A(f"v_add_f32_dpp {vr(GU+16*m+i)}, {vr(GU+16*m+i)}, {vr(GU+16*m+i)} {ROR}")
    A("s_mov_b32 s60, 0x3d372713")
    A("s_mov_b32 s61, 0xc0135761")
    HOPR = 34
    for i in range(4):
        g0, g1, u0, u1, z0, z1 = 18, 19, 20, 21, 22, 23
        A(f"v_cvt_pk_bf16_f32 {vr(z0)}, {vr(GU+2*i)}, {vr(GU+2*i+1)}")
        A(f"v_cvt_pk_bf16_f32 {vr(z1)}, {vr(GU+16+2*i)}, {vr(GU+16+2*i+1)}")
        A(f"v_lshlrev_b32 {vr(g0)}, 16, {vr(z0)}"); A(f"v_and_b32 {vr(g1)}, 0xffff0000, {vr(z0)}")
        A(f"v_lshlrev_b32 {vr(u0)}, 16, {vr(z1)}"); A(f"v_and_b32 {vr(u1)}, 0xffff0000, {vr(z1)}")
        for g, z in ((g0, z0), (g1, z1)):
            A(f"v_mul_f32 {vr(z)}, {vr(g)}, {vr(g)}")
            A(f"v_mul_f32 {vr(z)}, s60, {vr(z)}")
            A(f"v_fma_f32 {vr(z)}, {vr(z)}, {vr(g)}, {vr(g)}")
            A(f"v_mul_f32 {vr(z)}, s61, {vr(z)}")
            A(f"v_exp_f32 {vr(z)}, {vr(z)}")
            A("s_nop 0")
            A(f"v_add_f32 {vr(z)}, 1.0, {vr(z)}")
            A(f"v_rcp_f32 {vr(z)}, {vr(z)}")
            A("s_nop 0")
            A(f"v_mul_f32 {vr(g)}, {vr(g)}, {vr(z)}")
        A(f"v_cvt_pk_bf16_f32 {vr(z0)}, {vr(g0)}, {vr(g1)}")
        A(f"v_lshlrev_b32 {vr(g0)}, 16, {vr(z0)}"); A(f"v_and_b32 {vr(g1)}, 0xffff0000, {vr(z0)}")
        A(f"v_mul_f32 {vr(g0)}, {vr(g0)}, {vr(u0)}"); A(f"v_mul_f32 {vr(g1)}, {vr(g1)}, {vr(u1)}")
        A(f"v_cvt_pk_bf16_f32 {vr(HOPR+i)}, {vr(g0)}, {vr(g1)}")
    for j in range(8):
        op = 10 + 4 * (j & 1)
        sel = "s58" if (j & 1) == 0 else "s59"
        dw = j >> 1
        for t in range(4):
            A(f"v_perm_b32 {vr(op+t)}, {vr(WD+8*t+4+dw)}, {vr(WD+8*t+dw)}, {sel}")
        A("s_nop 1")
        A(f"v_mfma_f32_16x16x32_bf16 {vr(ACC2+4*j,4)}, {vr(op,4)}, {vr(HOPR,4)}, 0")
    for j in range(8):
        sel = "s58" if (j & 1) == 0 else "s59"
        dw = j >> 1
        for t in range(4):
            A(f"v_perm_b32 {vr(WOP+4*j+t)}, {vr(WO+8*t+4+dw)}, {vr(WO+8*t+dw)}, {sel}")
    A("v_lshlrev_b32 v4, 17, v2"); A("v_lshl_add_u32 v4, v3, 14, v4"); A("v_lshl_add_u32 v4, v6, 5, v4")
    A("s_lshl_b32 s60, s79, 15"); A("s_lshl_b32 s61, s78, 9"); A("s_add_u32 s60, s60, s61"); A("s_lshl_b32 s61, s3, 7"); A("s_add_u32 s60, s60, s61")
    A(f"s_add_u32 s81, s60, {WS_OP}")
    for s_ in range(1, 4):
        A(f"s_add_u32 s{81+s_}, s81, {4096*s_}")
    A("v_lshlrev_b32 v2, 11, v2"); A("v_lshl_add_u32 v2, v3, 5, v2")
    A("s_lshl_b32 s60, s79, 9"); A("s_lshl_b32 s61, s78, 6"); A("s_add_u32 s60, s60, s61"); A(f"s_add_u32 s85, s60, {WS_ST}")
    A(f"s_mov_b32 s69, 0x{LOG2E:x}")
    stamp(8)
    lds_wait(F_O, 4, 8, 7, sleep=4)
    stamp(9)
    def h1loads():
        A(f"buffer_load_dwordx4 {vr(STT,4)}, v2, s[36:39], s85 offen sc1")
        A(f"buffer_load_dwordx4 {vr(STT+4,4)}, v2, s[36:39], s85 offen offset:16 sc1")
        for s_ in range(4):
            A(f"buffer_load_dwordx4 {vr(OD+8*s_,4)}, v4, s[36:39], s{81+s_} offen sc1")
            A(f"buffer_load_dwordx4 {vr(OD+8*s_+4,4)}, v4, s[36:39], s{81+s_} offen offset:16 sc1")
    if opt.get("h1pre", 1):
        def h1pre():
            A(f"buffer_load_dwordx4 {vr(STT,4)}, v2, s[36:39], s85 offen sc1")
            A(f"buffer_load_dwordx4 {vr(STT+4,4)}, v2, s[36:39], s85 offen offset:16 sc1")
        poll_loop(h1pre, list(range(STT, STT + 8)), 8, "0xffff")
    poll_loop(h1loads, list(range(STT, STT + 8)) + list(range(OD, OD + 32)), 8)
    stamp(10)
    A(f"v_max3_f32 v10, {vr(STT)}, {vr(STT+2)}, {vr(STT+4)}")
    A(f"v_max_f32 v10, v10, {vr(STT+6)}")
    A("s_nop 1")
    A(f"v_max_f32_dpp v10, v10, v10 {ROR}")
    for s_ in range(4):
        A(f"v_sub_f32 {vr(STT+2*s_)}, {vr(STT+2*s_)}, v10")
    for s_ in range(4):
        A(f"v_mul_f32 {vr(STT+2*s_)}, s69, {vr(STT+2*s_)}")
    for s_ in range(4):
        A(f"v_exp_f32 {vr(STT+2*s_)}, {vr(STT+2*s_)}")
    A("s_nop 0")
    A(f"v_mul_f32 v11, {vr(STT)}, {vr(STT+1)}")
    for s_ in range(1, 4):
        A(f"v_fmac_f32 v11, {vr(STT+2*s_)}, {vr(STT+2*s_+1)}")
    A("s_nop 1")
    A(f"v_add_f32_dpp v11, v11, v11 {ROR}")
    A("v_rcp_f32 v11, v11")
    for i in range(8):
        A(f"v_mul_f32 {vr(12+i)}, {vr(STT)}, {vr(OD+i)}")
    for s_ in range(1, 4):
        for i in range(8):
            A(f"v_fmac_f32 {vr(12+i)}, {vr(STT+2*s_)}, {vr(OD+8*s_+i)}")
    A("s_nop 1")
    for i in range(8):
        A(f"v_add_f32_dpp {vr(12+i)}, {vr(12+i)}, {vr(12+i)} {ROR}")
    for i in range(8):
        A(f"v_mul_f32 {vr(12+i)}, {vr(12+i)}, v11")
    for i in range(4):
        A(f"v_cvt_pk_bf16_f32 {vr(20+i)}, {vr(12+2*i)}, {vr(13+2*i)}")
    A("s_nop 1")
    for j in range(8):
        A(f"v_mfma_f32_16x16x32_bf16 {vr(ACC2+4*j,4)}, {vr(WOP+4*j,4)}, v[20:23], {vr(ACC2+4*j,4)}")
    A(f"v_mul_u32_u24 v3, {O_PITCH}, v5"); A("v_lshl_add_u32 v3, v6, 7, v3")
    A(f"s_mul_i32 s60, s3, {O_SLAB}"); A(f"s_add_u32 s60, s60, {L_T}"); A("v_add_u32 v3, s60, v3")
    A("v_cmp_gt_u32 vcc, 8, v5"); A("s_and_b64 exec, exec, vcc")
    A("s_nop 4")
    for j in range(8):
        A(f"ds_write_b128 v3, {vr(ACC2+4*j,4)} offset:{16*j}")
    A("s_mov_b64 exec, -1")
    A("v_lshrrev_b32 v3, 5, v0"); A("s_lshl_b32 s60, s3, 1"); A("v_add_u32 v3, s60, v3")
    A("v_and_b32 v4, 31, v0")
    A(f"v_mul_u32_u24 v8, {O_PITCH}, v3"); A("v_lshl_add_u32 v8, v4, 4, v8"); A(f"v_add_u32 v8, {L_T}, v8")
    A("v_lshlrev_b32 v3, 9, v3"); A("v_lshl_add_u32 v3, v4, 4, v3")
    A("s_lshl_b32 s61, s57, 5"); A("s_add_u32 s61, s61, s56"); A("s_lshl_b32 s61, s61, 12"); A(f"s_add_u32 s61, s61, {WS_FP}")
    A("s_waitcnt lgkmcnt(0)")
    A("s_barrier")
    for w in range(4):
        A(f"ds_read_b128 {vr(12+4*w,4)}, v8 offset:{O_SLAB*w}")
    A("s_waitcnt lgkmcnt(0)")
    for r in range(4):
        A(f"v_add_f32 {vr(12+r)}, {vr(12+r)}, {vr(16+r)}")
        A(f"v_add_f32 {vr(20+r)}, {vr(20+r)}, {vr(24+r)}")
    for r in range(4):
        A(f"v_add_f32 {vr(12+r)}, {vr(12+r)}, {vr(20+r)}")
    for r in range(4):
        A(f"v_min_u32 {vr(12+r)}, -2, {vr(12+r)}")
    A("buffer_store_dwordx4 v[12:15], v3, s[36:39], s61 offen sc1")
    stamp(11)
    A("s_cmp_lg_u32 s3, 0"); A("s_cbranch_scc1 L_Gexit")
    A("v_lshrrev_b32 v2, 3, v0"); A("v_and_b32 v3, 7, v0")
    A("v_lshlrev_b32 v4, 14, v2"); A("v_lshl_add_u32 v4, v3, 4, v4")
    A("s_lshl_b32 s60, s57, 17"); A("s_lshl_b32 s61, s78, 9"); A("s_add_u32 s60, s60, s61"); A("s_lshl_b32 s61, s79, 7"); A("s_add_u32 s60, s60, s61")
    A(f"s_add_u32 s81, s60, {WS_FP}")
    for s_ in range(1, 4):
        A(f"s_add_u32 s{81+s_}, s81, {4096*s_}")
    srd(48, "s22", "s23", 16384)
    def h2loads():
        for t in range(4):
            A(f"buffer_load_dwordx4 {vr(40+4*t,4)}, v4, s[36:39], s{81+t} offen sc1")
    poll_loop(h2loads, list(range(40, 56)), 8)
    stamp(12)
    for r in range(4):
        A(f"v_add_f32 {vr(40+r)}, {vr(40+r)}, {vr(44+r)}")
        A(f"v_add_f32 {vr(48+r)}, {vr(48+r)}, {vr(52+r)}")
    for r in range(4):
        A(f"v_add_f32 {vr(40+r)}, {vr(40+r)}, {vr(48+r)}")
    A("s_nop 1")
    for r in range(4):
        A(f"v_add_f32_dpp {vr(40+r)}, {vr(40+r)}, {vr(40+r)} {ROR}")
    xrow_reduce("v_add_f32", [40, 41, 42, 43], list(range(44, 52)))
    for r in range(1, 4):
        A(f"v_cmp_eq_u32 vcc, {r}, v2")
        A("s_nop 1")
        A(f"v_cndmask_b32 v40, v40, {vr(40+r)}, vcc")
    A("v_lshlrev_b32 v38, 16, v38")
    A("v_add_f32 v40, v40, v38")
    A("v_cvt_pk_bf16_f32 v40, v40, v40")
    A("v_lshlrev_b32 v4, 1, v0")
    A("s_mov_b64 exec, 0xffffffff")
    A("buffer_store_short v40, v4, s[48:51], s80 offen")
    A("s_mov_b64 exec, -1")
    A.label("L_Gexit")
    stamp(13)
    stamp_flush("G")
    A.label("L_end")
    A("s_endpgm")

    Ft = ['.section .rodata,"a"', ".p2align 6", f".amdhsa_kernel {NAME}",
          "  .amdhsa_next_free_vgpr 256", "  .amdhsa_next_free_sgpr 96", "  .amdhsa_accum_offset 256",
          "  .amdhsa_group_segment_fixed_size 0", "  .amdhsa_kernarg_size 96", "  .amdhsa_user_sgpr_count 2",
          "  .amdhsa_user_sgpr_kernarg_segment_ptr 1", "  .amdhsa_system_sgpr_workgroup_id_x 1", ".end_amdhsa_kernel"]
    return "\n".join(H + A.L + Ft) + "\n"


if __name__ == "__main__":
    out = sys.argv[1] if len(sys.argv) > 1 else "k.s"
    opt = {}
    for a in sys.argv[2:]:
        k, v = a.split("=")
        opt[k] = int(v)
    open(out, "w").write(gen(opt))
```

```python
import sys

NAME = "parallel_sum__gqa_block_cached__glu_gated_geglu__decode_kernel"

WS_P1, P1_MAT, P1_KQ, P1_B = 0x0, 0x80000, 0x20000, 0x4000
WS_ST, WS_TK, WS_OP, WS_FP, WS_DBG = 0x180000, 0x190000, 0x200000, 0x300000, 0x400000
WS_SIZE = 0x10000000
L_FLAG = 0x0
F_XN, F_P1, F_Q, F_O, F_P2, F_TK, F_CL = 0, 4, 8, 12, 16, 20, 24
L_XN, XN_PITCH = 0x100, 528
L_P1, P1_PITCH = 0x1200, 320
P1_WAVE, P1_UNIT = 8 * 320, 4 * 8 * 320
L_Q, Q_PITCH = 0x8A00, 288
L_ST = 0x9400
L_O, O_SLAB, O_PITCH = 0x9800, 8 * 528, 528
L_T = L_O + 4 * O_SLAB
LDS_BYTES = L_T + 4 * O_SLAB
SPIN_MAX = 20000
OOB = 0x7ff00000

LOG2E = 0x3FB8AA3B
SCALE = 0x3DB504F3


class Asm:
    def __init__(self):
        self.L = []
        self.uid = 0
    def __call__(self, s):
        if s == "s_mov_b64 exec, 0xffffffff":
            self.L.append("    s_mov_b32 exec_lo, -1"); self.L.append("    s_mov_b32 exec_hi, 0")
            return
        self.L.append("    " + s)
    def label(self, s):
        self.L.append(s + ":")
    def new(self, p="L"):
        self.uid += 1
        return f"{p}_{self.uid}"
    def c(self, s):
        self.L.append("    ; " + s)


def vr(a, n=1):
    return f"v{a}" if n == 1 else f"v[{a}:{a+n-1}]"


def gen(opt):
    A = Asm()
    stamps = opt.get("stamps", False)
    psleep = opt.get("psleep", 2)

    def stamp(idx):
        if not stamps:
            return
        A("s_memrealtime s[90:91]")
        A("s_waitcnt lgkmcnt(0)")
        A(f"v_writelane_b32 v9, s90, {idx}")

    def stamp_flush(role="A"):
        if not stamps:
            return
        if opt.get("dbg", 0):
            m = {"A": [(0, 1, 1), (0, 2, 0), (2, 3, 0), (3, 4, 0), (3, 5, 1), (4, 12, 0)],
                 "G": [(0, 1, 1), (0, 2, 0), (4, 6, 0), (6, 7, 0), (10, 8, 0), (11, 9, 0), (12, 10, 0), (13, 11, 0), (3, 13, 0), (14, 14, 0), (9, 15, 0)]}[role]
            A("v_mov_b32 v8, 0")
            mask = 0
            for (src, dst, inv) in m:
                A(f"v_readlane_b32 s92, v9, {src}")
                A("s_nop 3")
                if inv:
                    A("s_not_b32 s92, s92")
                A(f"v_writelane_b32 v8, s92, {dst}")
                mask |= 1 << dst
            A(f"s_mov_b64 exec, 0x{mask:x}")
            A("v_lshlrev_b32 v9, 2, v0")
            if opt["dbg"] == 1:
                A("buffer_atomic_umax v8, v9, s[52:55], 0 offen")
            else:
                A("ds_max_u32 v9, v8 offset:64")
                if role == "G":
                    A("s_cmp_lg_u32 s3, 0"); A("s_cbranch_scc1 L_nodbg")
                    A("s_mov_b64 exec, 0xfffe")
                    A("v_lshlrev_b32 v9, 2, v0")
                    A("s_waitcnt lgkmcnt(0)")
                    A("ds_read_b32 v8, v9 offset:64")
                    A("s_waitcnt lgkmcnt(0)")
                    A("buffer_atomic_umax v8, v9, s[52:55], 0 offen")
                    A.label("L_nodbg")
            A("s_mov_b64 exec, -1")
            return
        A("s_lshl_b32 s92, s2, 4"); A("s_add_u32 s92, s92, s3"); A("s_lshl_b32 s92, s92, 6")
        A(f"s_add_u32 s92, s92, {WS_DBG}")
        A("s_mov_b64 exec, 0xffff")
        A("v_lshlrev_b32 v8, 2, v0")
        A("buffer_store_dword v9, v8, s[36:39], s92 offen")
        A("s_mov_b64 exec, -1")

    def srd(d, lo, hi, size):
        A(f"s_mov_b32 s{d}, {lo}"); A(f"s_mov_b32 s{d+1}, {hi}")
        A(f"s_mov_b32 s{d+2}, {size}"); A(f"s_mov_b32 s{d+3}, 0x00020000")

    def lds_wait(flag, count, vt, va, sleep=1):
        l = A.new("Llw"); d = A.new("Llwd")
        A.label(l)
        A(f"ds_read_b32 {vr(vt)}, {vr(va)} offset:{L_FLAG+flag}")
        A("s_waitcnt lgkmcnt(0)")
        A(f"v_readfirstlane_b32 s60, {vr(vt)}")
        A(f"s_cmp_ge_u32 s60, {count}")
        A(f"s_cbranch_scc1 {d}")
        if sleep:
            A(f"s_sleep {sleep}")
        A(f"s_branch {l}")
        A.label(d)

    def lds_signal(flag, vt, va):
        A("s_waitcnt lgkmcnt(0)")
        A("s_mov_b64 exec, 1")
        A(f"v_mov_b32 {vr(vt)}, 1")
        A(f"ds_add_u32 {vr(va)}, {vr(vt)} offset:{L_FLAG+flag}")
        A("s_mov_b64 exec, -1")

    def xrow_reduce(op, vs, ts):
        for sw in ("v_permlane16_swap_b32", "v_permlane32_swap_b32"):
            for i, v in enumerate(vs):
                A(f"v_mov_b32 {vr(ts[2*i])}, {vr(v)}")
                A(f"v_mov_b32 {vr(ts[2*i+1])}, {vr(v)}")
            A("s_nop 1")
            for i, v in enumerate(vs):
                A(f"{sw} {vr(ts[2*i])}, {vr(ts[2*i+1])}")
            A("s_nop 1")
            for i, v in enumerate(vs):
                A(f"{op} {vr(v)}, {vr(ts[2*i])}, {vr(ts[2*i+1])}")

    def row_reduce_add(vs):
        for ctl in ("quad_perm:[1,0,3,2]", "quad_perm:[2,3,0,1]", "row_half_mirror", "row_mirror"):
            if len(vs) < 3:
                A("s_nop 1")
            for v in vs:
                A(f"v_add_f32_dpp {vr(v)}, {vr(v)}, {vr(v)} {ctl} row_mask:0xf bank_mask:0xf")

    def bf16r(v, t):
        A(f"v_cvt_pk_bf16_f32 {vr(t)}, {vr(v)}, {vr(v)}")
        A(f"v_lshlrev_b32 {vr(v)}, 16, {vr(t)}")

    def sentinel_pending(regs, vt):
        A(f"v_max3_u32 {vr(vt)}, {vr(regs[0])}, {vr(regs[1])}, {vr(regs[2])}")
        rest = regs[3:]
        while len(rest) >= 2:
            A(f"v_max3_u32 {vr(vt)}, {vr(vt)}, {vr(rest[0])}, {vr(rest[1])}")
            rest = rest[2:]
        if rest:
            A(f"v_max_u32 {vr(vt)}, {vr(vt)}, {vr(rest[0])}")
        A(f"v_cmp_eq_u32 vcc, -1, {vr(vt)}")

    def poll_loop(loads, regs, vt, mask="-1"):
        l = A.new("Lpoll"); d = A.new("Lpolld"); f = A.new("Lpollf")
        A(f"s_mov_b64 exec, {mask}")
        A("s_mov_b32 s61, 0")
        A(f"s_branch {f}")
        A.label(l)
        if psleep:
            A(f"s_sleep {psleep}")
        A.label(f)
        loads()
        A("s_waitcnt vmcnt(0)")
        sentinel_pending(regs, vt)
        A("s_add_u32 s61, s61, 1")
        A(f"s_cmp_ge_u32 s61, s62")
        A(f"s_cbranch_scc1 {d}")
        A("s_and_b64 exec, exec, vcc")
        A(f"s_cbranch_scc1 {l}")
        A.label(d)
        A("s_mov_b64 exec, -1")

    H = []
    H.append(f"; @launch grid=(256,1,1) block=(512,1,1) lds={LDS_BYTES}")
    H.append('.amdgcn_target "amdgcn-amd-amdhsa--gfx950"')
    H.append(".text"); H.append(f".globl {NAME}"); H.append(".p2align 8"); H.append(f".type {NAME},@function")
    H.append(f"{NAME}:")

    A("s_cmp_ge_u32 s2, 256")
    A("s_cbranch_scc1 L_end")
    A("s_load_dwordx16 s[4:19], s[0:1], 0")
    A("s_load_dwordx8 s[20:27], s[0:1], 64")
    A("v_lshrrev_b32 v1, 6, v0")
    A("v_and_b32 v0, 63, v0")
    A("v_mov_b32 v9, 0")
    A("v_readfirstlane_b32 s3, v1")
    A("v_lshlrev_b32 v3, 2, v0")
    A("s_lshr_b32 s56, s2, 3")
    A("s_and_b32 s57, s2, 7")
    A(f"s_mov_b32 s62, {SPIN_MAX}")
    A("s_mov_b32 s58, 0x05040100")
    A("s_mov_b32 s59, 0x07060302")
    A("s_mul_i32 s63, s56, 7"); A("s_add_u32 s63, s63, s57"); A("s_add_u32 s64, s56, 224")
    A("s_cmp_eq_u32 s57, 7"); A("s_cselect_b32 s63, s64, s63")
    A("s_and_b32 s64, s63, 3")
    A("s_lshr_b32 s65, s63, 2")
    A("s_lshl_b32 s66, s64, 17"); A("s_lshl_b32 s60, s65, 8"); A("s_add_u32 s66, s66, s60")
    A("v_and_b32 v5, 15, v0"); A("v_lshrrev_b32 v6, 4, v0")
    A("v_mov_b32 v7, 0")
    A("s_cmp_lg_u32 s3, 4")
    A("s_cbranch_scc1 L_noz")
    A("ds_write_b32 v3, v9")
    A(f"v_mov_b32 v8, {4*(3+opt.get('nx',2))}")
    A(f"ds_write_b32 v7, v8 offset:{L_FLAG+F_TK}")
    A.label("L_noz")
    A("s_waitcnt lgkmcnt(0)")
    if opt.get("earlybar", 1):
        A("s_barrier")
    srd(36, "s26", "s27", WS_SIZE)
    stamp(0)
    A("s_cmp_lt_u32 s3, 4")
    A("s_cbranch_scc1 L_G")

    vK, vV, vM, vL = 1, 2, 3, 4
    T = [5, 6, 7, 8]
    S, P, VOP, Q, O, BUF = 10, 14, 16, 24, 40, 72
    NB, NX = 3, opt.get("nx", 2)
    TK = 84
    A.c("---------------- attention waves")
    A("s_setprio 3")
    for i in range(4):
        A(f"v_mov_b32 {vr(O+i)}, -1")
    A("s_sub_u32 s64, s3, 4")
    A("v_lshlrev_b32 v2, 14, v6"); A("v_lshl_add_u32 v2, v5, 4, v2")
    A("v_lshlrev_b32 v1, 4, v0")
    A("s_cmp_eq_u32 s64, 3"); A("s_cbranch_scc1 L_clrst")
    A("s_lshl_b32 s60, s64, 19"); A("s_add_u32 s70, s66, s60"); A(f"s_add_u32 s71, s70, {4*P1_B}")
    A(f"buffer_store_dwordx4 {vr(O,4)}, v2, s[36:39], s70 offen sc1")
    A(f"buffer_store_dwordx4 {vr(O,4)}, v2, s[36:39], s71 offen sc1")
    A("s_branch L_clr2")
    A.label("L_clrst")
    A("s_lshl_b32 s60, s56, 9"); A("s_lshl_b32 s61, s57, 3"); A("s_add_u32 s60, s60, s61"); A(f"s_add_u32 s60, s60, {WS_ST}")
    A("v_lshlrev_b32 v2, 6, v0")
    A("s_mov_b64 exec, 0xff")
    A(f"buffer_store_dwordx2 {vr(O,2)}, v2, s[36:39], s60 offen sc1")
    A("s_mov_b64 exec, -1")
    A.label("L_clr2")
    A("s_lshl_b32 s61, s64, 10")
    A("s_lshl_b32 s60, s2, 12"); A("s_add_u32 s60, s60, s61"); A(f"s_add_u32 s71, s60, {WS_OP}")
    A(f"buffer_store_dwordx4 {vr(O,4)}, v1, s[36:39], s71 offen sc1")
    A("s_lshl_b32 s60, s57, 5"); A("s_add_u32 s60, s60, s56"); A("s_lshl_b32 s60, s60, 12"); A("s_add_u32 s60, s60, s61"); A(f"s_add_u32 s72, s60, {WS_FP}")
    A(f"buffer_store_dwordx4 {vr(O,4)}, v1, s[36:39], s72 offen sc1")
    srd(52, "s24", "s25", 256)
    A("s_and_b32 s73, s2, 3"); A("s_lshl_b32 s73, s73, 6")
    A("s_lshl_b32 s63, s56, 21")
    A("s_add_u32 s28, s6, s63"); A("s_addc_u32 s29, s7, 0"); A("s_mov_b32 s30, 0x200000"); A("s_mov_b32 s31, 0x00020000")
    A("s_add_u32 s32, s8, s63"); A("s_addc_u32 s33, s9, 0"); A("s_mov_b32 s34, 0x200000"); A("s_mov_b32 s35, 0x00020000")
    A(f"v_lshlrev_b32 {vr(vK)}, 8, v5"); A(f"v_lshl_add_u32 {vr(vK)}, v6, 4, {vr(vK)}")
    A(f"v_lshlrev_b32 {vr(vV)}, 10, v6"); A(f"v_lshl_add_u32 {vr(vV)}, v5, 4, {vr(vV)}")
    A("s_lshl_b32 s65, s57, 18")
    A("v_mov_b32 v22, 1"); A("v_mov_b32 v21, 0")
    if not opt.get("earlybar", 1):
        A("s_barrier")
    def tk_req():
        A("s_mov_b64 exec, 1")
        A(f"ds_add_rtn_u32 v23, v21, v22 offset:{L_FLAG+F_TK}")
        A("s_mov_b64 exec, -1")
    A("s_waitcnt vmcnt(0)")
    A("s_mov_b64 exec, 1")
    A(f"ds_add_rtn_u32 v20, v21, v22 offset:{L_FLAG+F_CL}")
    A(f"ds_add_rtn_u32 v23, v21, v22 offset:{L_FLAG+F_TK}")
    A("s_waitcnt lgkmcnt(0)")
    A("v_readfirstlane_b32 s60, v20")
    A("s_cmp_lg_u32 s60, 3"); A("s_cbranch_scc1 L_noarr")
    A("buffer_atomic_add v22, v21, s[52:55], s73 offen")
    A.label("L_noarr")
    A("s_mov_b64 exec, -1")
    A("s_setprio 0")
    stamp(5)

    def a_issue(b, first=False):
        sk = A.new("Lnoiss")
        if first:
            A(f"s_add_u32 s{TK+b}, s64, {4*b}")
            A(f"s_lshl_b32 s68, s{TK+b}, 12"); A("s_add_u32 s68, s68, s65")
        else:
            A("s_waitcnt lgkmcnt(0)")
            A(f"v_readfirstlane_b32 s{TK+b}, v23")
            tk_req()
            A(f"s_lshl_b32 s68, s{TK+b}, 12"); A("s_add_u32 s68, s68, s65")
            A(f"s_cmp_ge_u32 s{TK+b}, 64")
            A(f"s_cbranch_scc1 {sk}")
        for j in range(4):
            A(f"buffer_load_dwordx4 {vr(BUF+32*b+4*j,4)}, {vr(vK)}, s[28:31], s68 offen offset:{64*j} nt")
        for j in range(4):
            A(f"buffer_load_dwordx4 {vr(BUF+32*b+16+4*j,4)}, {vr(vV)}, s[32:35], s68 offen offset:{256*j} nt")
        A.label(sk)

    def a_wait(b, base):
        if b >= NB:
            d = A.new("Lw")
            A(f"s_waitcnt vmcnt({base + 8*(NB+NX-1-b) + 8*NB})")
            A(f"s_cmp_lt_u32 s{TK+NB-1}, 64"); A(f"s_cbranch_scc1 {d}")
            A(f"s_waitcnt vmcnt(0)")
            A.label(d)
            return
        d = A.new("Lw")
        A(f"s_waitcnt vmcnt({base+16})")
        A(f"s_cmp_lt_u32 s{TK+(b+2)%3}, 64"); A(f"s_cbranch_scc1 {d}")
        A(f"s_waitcnt vmcnt({base+8})")
        A(f"s_cmp_lt_u32 s{TK+(b+1)%3}, 64"); A(f"s_cbranch_scc1 {d}")
        A(f"s_waitcnt vmcnt({base})")
        A.label(d)

    def a_proc(b):
        kb = BUF + 32 * b; vb = kb + 16
        a_wait(b, 4)
        A(f"v_mfma_f32_16x16x32_bf16 {vr(S,4)}, {vr(kb,4)}, {vr(Q,4)}, 0")
        for j in range(1, 4):
            A(f"v_mfma_f32_16x16x32_bf16 {vr(S,4)}, {vr(kb+4*j,4)}, {vr(Q+4*j,4)}, {vr(S,4)}")
        A("s_nop 7")
        t0, t1, t2, t3 = T
        for rnd in range(2):
            A(f"v_cvt_pk_bf16_f32 {vr(t0)}, {vr(S)}, {vr(S+1)}")
            A(f"v_cvt_pk_bf16_f32 {vr(t1)}, {vr(S+2)}, {vr(S+3)}")
            A(f"v_lshlrev_b32 {vr(S)}, 16, {vr(t0)}")
            A(f"v_and_b32 {vr(S+1)}, 0xffff0000, {vr(t0)}")
            A(f"v_lshlrev_b32 {vr(S+2)}, 16, {vr(t1)}")
            A(f"v_and_b32 {vr(S+3)}, 0xffff0000, {vr(t1)}")
            if rnd == 0:
                for r in range(4):
                    A(f"v_mul_f32 {vr(S+r)}, s70, {vr(S+r)}")
        A(f"v_max3_f32 {vr(t2)}, {vr(S)}, {vr(S+1)}, {vr(S+2)}")
        A(f"v_max3_f32 {vr(t2)}, {vr(t2)}, {vr(S+3)}, {vr(vM)}")
        xrow_reduce("v_max_f32", [t2], [t0, t1])
        A(f"v_sub_f32 {vr(t3)}, {vr(vM)}, {vr(t2)}")
        A(f"v_mul_f32 {vr(t3)}, s69, {vr(t3)}")
        A(f"v_exp_f32 {vr(t3)}, {vr(t3)}")
        A(f"v_mov_b32 {vr(vM)}, {vr(t2)}")
        A(f"v_mul_f32 {vr(t2)}, s69, {vr(t2)}")
        for r in range(4):
            A(f"v_fma_f32 {vr(S+r)}, {vr(S+r)}, s69, -{vr(t2)}")
        for r in range(4):
            A(f"v_exp_f32 {vr(S+r)}, {vr(S+r)}")
        A(f"v_mul_f32 {vr(vL)}, {vr(vL)}, {vr(t3)}")
        A(f"v_add_f32 {vr(t0)}, {vr(S)}, {vr(S+1)}")
        A(f"v_add_f32 {vr(t1)}, {vr(S+2)}, {vr(S+3)}")
        A(f"v_cvt_pk_bf16_f32 {vr(P)}, {vr(S)}, {vr(S+1)}")
        A(f"v_cvt_pk_bf16_f32 {vr(P+1)}, {vr(S+2)}, {vr(S+3)}")
        A(f"v_add_f32 {vr(vL)}, {vr(vL)}, {vr(t0)}")
        A(f"v_add_f32 {vr(vL)}, {vr(vL)}, {vr(t1)}")
        sk = A.new("Lnors")
        A(f"v_cmp_neq_f32 vcc, 1.0, {vr(t3)}")
        A("s_cbranch_vccz " + sk)
        for i in range(32):
            A(f"v_mul_f32 {vr(O+i)}, {vr(O+i)}, {vr(t3)}")
        A.label(sk)
        a_wait(b, 0)
        for j in range(8):
            op = VOP + 2 * (j & 1)
            sel = "s58" if (j & 1) == 0 else "s59"
            dw = j >> 1
            A(f"v_perm_b32 {vr(op)}, {vr(vb+4+dw)}, {vr(vb+dw)}, {sel}")
            A(f"v_perm_b32 {vr(op+1)}, {vr(vb+12+dw)}, {vr(vb+8+dw)}, {sel}")
            A("s_nop 1")
            A(f"v_mfma_f32_16x16x16_bf16 {vr(O+4*j,4)}, {vr(op,2)}, {vr(P,2)}, {vr(O+4*j,4)}")

    for b in range(NB + NX):
        a_issue(b, True)
    for i in range(32):
        A(f"v_mov_b32 {vr(O+i)}, 0")
    A(f"v_mov_b32 {vr(vM)}, 0xff800000")
    A(f"v_mov_b32 {vr(vL)}, 0")
    A("s_mov_b32 s67, 1")
    stamp(1)
    lds_wait(F_Q, 4, 8, 7, sleep=2)
    stamp(2)
    A("v_and_b32 v7, 7, v0"); A(f"v_mul_u32_u24 v7, {Q_PITCH}, v7"); A("v_lshl_add_u32 v7, v6, 4, v7")
    for j in range(4):
        A(f"ds_read_b128 {vr(Q+4*j,4)}, v7 offset:{L_Q+64*j}")
    A(f"s_mov_b32 s69, 0x{LOG2E:x}")
    A(f"s_mov_b32 s70, 0x{SCALE:x}")
    A("s_waitcnt lgkmcnt(0)")
    A.label("L_Aloop")
    for b in range(NB):
        A(f"s_cmp_ge_u32 s{TK+b}, 64")
        A("s_cbranch_scc1 L_Adone")
        a_proc(b)
        a_issue(b)
    A("s_cmp_eq_u32 s67, 0")
    A("s_cbranch_scc1 L_Aloop")
    A("s_mov_b32 s67, 0")
    for b in range(NB, NB + NX):
        a_proc(b)
    A("s_branch L_Aloop")
    A.label("L_Adone")
    A("s_setprio 3")
    stamp(3)
    xrow_reduce("v_add_f32", [vL], [T[0], T[1]])
    A("v_and_b32 v5, 15, v0"); A("v_lshrrev_b32 v6, 4, v0")
    A(f"v_mul_u32_u24 v7, {O_PITCH}, v5"); A("v_lshl_add_u32 v7, v6, 7, v7")
    A(f"s_mul_i32 s60, s64, {O_SLAB}")
    A("v_add_u32 v7, s60, v7")
    A("s_lshl_b32 s60, s64, 3")
    A("v_lshlrev_b32 v8, 5, v5"); A("v_add_u32 v8, s60, v8")
    A("v_cmp_gt_u32 vcc, 8, v5")
    A("s_and_b64 exec, exec, vcc")
    for j in range(8):
        A(f"ds_write_b128 v7, {vr(O+4*j,4)} offset:{L_O+16*j}")
    A(f"v_mov_b32 {vr(S)}, {vr(vM)}"); A(f"v_mov_b32 {vr(S+1)}, {vr(vL)}")
    A(f"ds_write_b64 v8, {vr(S,2)} offset:{L_ST}")
    A("s_mov_b64 exec, -1")
    A("v_mov_b32 v7, 0")
    lds_signal(F_O, 8, 7)
    A("v_lshrrev_b32 v5, 5, v0"); A("s_lshl_b32 s60, s64, 1"); A("v_add_u32 v5, s60, v5")
    A("v_and_b32 v6, 31, v0")
    A(f"v_mul_u32_u24 v20, {O_PITCH}, v5"); A("v_lshl_add_u32 v20, v6, 4, v20")
    A("v_lshlrev_b32 v21, 5, v5")
    A("v_lshlrev_b32 v23, 6, v5")
    A("v_lshlrev_b32 v22, 9, v5"); A("v_lshl_add_u32 v22, v6, 4, v22")
    A("s_lshl_b32 s71, s2, 12"); A(f"s_add_u32 s71, s71, {WS_OP}")
    A("s_lshl_b32 s72, s56, 9"); A("s_lshl_b32 s61, s57, 3"); A("s_add_u32 s72, s72, s61"); A(f"s_add_u32 s72, s72, {WS_ST}")
    lds_wait(F_O, 4, 8, 7, sleep=0)
    for i in range(2):
        A(f"ds_read_b128 {vr(Q+4*i,4)}, v21 offset:{L_ST+16*i}")
    for a in range(4):
        A(f"ds_read_b128 {vr(BUF+4*a,4)}, v20 offset:{L_O+O_SLAB*a}")
    A("s_waitcnt lgkmcnt(4)")
    A(f"v_max3_f32 v10, {vr(Q)}, {vr(Q+2)}, {vr(Q+4)}")
    A(f"v_max_f32 v10, v10, {vr(Q+6)}")
    for a in range(4):
        A(f"v_sub_f32 {vr(Q+2*a)}, {vr(Q+2*a)}, v10")
    for a in range(4):
        A(f"v_mul_f32 {vr(Q+2*a)}, s69, {vr(Q+2*a)}")
    for a in range(4):
        A(f"v_exp_f32 {vr(Q+2*a)}, {vr(Q+2*a)}")
    A("s_nop 0")
    A(f"v_mul_f32 v11, {vr(Q)}, {vr(Q+1)}")
    for a in range(1, 4):
        A(f"v_fmac_f32 v11, {vr(Q+2*a)}, {vr(Q+2*a+1)}")
    A("s_waitcnt lgkmcnt(0)")
    for r in range(4):
        A(f"v_mul_f32 {vr(O+r)}, {vr(Q)}, {vr(BUF+r)}")
    for a in range(1, 4):
        for r in range(4):
            A(f"v_fmac_f32 {vr(O+r)}, {vr(Q+2*a)}, {vr(BUF+4*a+r)}")
    for r in range(4):
        A(f"v_min_u32 {vr(O+r)}, -2, {vr(O+r)}")
    A("v_min_u32 v10, -2, v10"); A("v_min_u32 v11, -2, v11")
    A(f"buffer_store_dwordx4 {vr(O,4)}, v22, s[36:39], s71 offen sc1")
    A("v_cmp_eq_u32 vcc, 0, v6")
    A("s_and_b64 exec, exec, vcc")
    A("buffer_store_dwordx2 v[10:11], v23, s[36:39], s72 offen sc1")
    A("s_mov_b64 exec, -1")
    A.label("L_Aexit")
    stamp(4)
    stamp_flush()
    A("s_endpgm")

    A.label("L_G")
    A.c("---------------- GEMV / control waves")
    X, XS, XOP, WQ, WG, WU, TMP = 10, 26, 30, 40, 72, 104, 136
    srd(32, "s4", "s5", 16384)
    A("v_lshlrev_b32 v1, 5, v0")
    A("s_lshl_b32 s60, s3, 12")
    for r in range(2):
        for hlf in range(2):
            A(f"buffer_load_dwordx4 {vr(X+8*r+4*hlf,4)}, v1, s[32:35], s60 offen offset:{2048*r+16*hlf}")
    A("v_lshlrev_b32 v2, 3, v0")
    A("s_lshl_b32 s61, s64, 9"); A("s_add_u32 s60, s60, s61")
    for r in range(2):
        A(f"buffer_load_dwordx2 {vr(XS+2*r,2)}, v2, s[32:35], s60 offen offset:{2048*r}")
    srd(28, "s10", "s11", 0x800000)
    A("s_lshl_b32 s67, s64, 2"); A("s_add_u32 s67, s67, s3"); A("s_lshl_b32 s67, s67, 6")
    A("s_lshl_b32 s61, s65, 7")
    A("s_lshl_b32 s68, s67, 13"); A("s_add_u32 s68, s68, s61")
    A("v_lshlrev_b32 v3, 16, v6"); A("v_lshl_add_u32 v3, v5, 3, v3")

    def w_issue(base, v, sd, pitch):
        for kb in range(2):
            for i in range(8):
                A(f"buffer_load_dwordx2 {vr(base+16*kb+2*i,2)}, {v}, s[{sd}:{sd+3}], s68 offen nt")
                if not (kb == 1 and i == 7):
                    A(f"s_add_u32 s68, s68, {pitch*(25 if i == 7 else 1)}")
    w_issue(WQ, "v3", 28, 8192)
    touch = opt.get("touch", 0)
    if touch:
        A("s_cmp_eq_u32 s3, 1"); A("s_cselect_b32 s40, s18, s16"); A("s_cselect_b32 s41, s19, s17")
        A("s_cmp_eq_u32 s3, 2"); A("s_cselect_b32 s40, s12, s40"); A("s_cselect_b32 s41, s13, s41")
        A("s_cmp_eq_u32 s3, 3"); A("s_cselect_b32 s40, s20, s40"); A("s_cselect_b32 s41, s21, s41")
        A("s_mov_b32 s42, 0x700000"); A("s_mov_b32 s43, 0x00020000")
        A("s_cmp_eq_u32 s3, 2"); A("s_cselect_b32 s42, 0x800000, s42")
        A(f"s_mul_i32 s60, s64, {256*7168}"); A("s_add_u32 s60, s60, s61")
        A("s_lshl_b32 s69, s56, 18")
        A(f"s_mul_i32 s70, s56, {112*2048}")
        A("s_cmp_eq_u32 s3, 3"); A("s_cselect_b32 s69, s70, s69")
        A("s_lshl_b32 s70, s57, 8"); A("s_add_u32 s69, s69, s70")
        A("s_cmp_lt_u32 s3, 2"); A("s_cselect_b32 s60, s60, s69")
        A("s_movk_i32 s70, 8192"); A("s_cselect_b32 s70, 57344, s70")
        A("v_mul_lo_u32 v4, v0, s70")
        A("s_mov_b64 exec, 0xffffffff")
        A("buffer_load_dword v39, v4, s[40:43], s60 offen")
        A("s_mov_b64 exec, -1")
    if not opt.get("earlybar", 1):
        A("s_barrier")
    stamp(1)
    SM = [TMP, TMP + 1]; SQ = [TMP + 2, TMP + 3]; TT = list(range(TMP + 4, TMP + 12))
    A("s_mov_b32 s60, 0x3f803f80")
    for i in range(4):
        A(f"v_mov_b32 {vr(TMP+i)}, 0")
    A(f"s_waitcnt vmcnt({18+touch})")
    for i in range(8):
        for r in range(2):
            A(f"v_dot2c_f32_bf16 {vr(SM[r])}, s60, {vr(X+8*r+i)}")
            A(f"v_dot2c_f32_bf16 {vr(SQ[r])}, {vr(X+8*r+i)}, {vr(X+8*r+i)}")
    A("s_nop 2")
    row_reduce_add(SM + SQ)
    xrow_reduce("v_add_f32", SM + SQ, TT)
    for r in range(2):
        A(f"v_mul_f32 {vr(SM[r])}, 0x3a800000, {vr(SM[r])}")
        A(f"v_mul_f32 {vr(SQ[r])}, 0x3a800000, {vr(SQ[r])}")
    for r in range(2):
        A(f"v_fma_f32 {vr(SQ[r])}, -{vr(SM[r])}, {vr(SM[r])}, {vr(SQ[r])}")
        A(f"v_max_f32 {vr(SQ[r])}, 0, {vr(SQ[r])}")
    for r in range(2):
        bf16r(SQ[r], TT[r])
    for r in range(2):
        A(f"v_add_f32 {vr(SQ[r])}, 0x3727c5ac, {vr(SQ[r])}")
    for r in range(2):
        bf16r(SQ[r], TT[r])
    for r in range(2):
        A(f"v_sqrt_f32 {vr(SQ[r])}, {vr(SQ[r])}")
    for r in range(2):
        bf16r(SM[r], TT[2 + r])
    for r in range(2):
        bf16r(SQ[r], TT[r])
    for r in range(2):
        A(f"v_rcp_f32 {vr(SQ[r])}, {vr(SQ[r])}")
    A(f"s_waitcnt vmcnt({16+touch})")
    for r in range(2):
        for i in range(2):
            a, b2, t = TT[0], TT[1], TT[2]
            src = XS + 2 * r + i
            A(f"v_lshlrev_b32 {vr(a)}, 16, {vr(src)}")
            A(f"v_and_b32 {vr(b2)}, 0xffff0000, {vr(src)}")
            A(f"v_sub_f32 {vr(a)}, {vr(a)}, {vr(SM[r])}")
            A(f"v_sub_f32 {vr(b2)}, {vr(b2)}, {vr(SM[r])}")
            A(f"v_cvt_pk_bf16_f32 {vr(t)}, {vr(a)}, {vr(b2)}")
            A(f"v_lshlrev_b32 {vr(a)}, 16, {vr(t)}")
            A(f"v_and_b32 {vr(b2)}, 0xffff0000, {vr(t)}")
            A(f"v_mul_f32 {vr(a)}, {vr(a)}, {vr(SQ[r])}")
            A(f"v_mul_f32 {vr(b2)}, {vr(b2)}, {vr(SQ[r])}")
            A(f"v_cvt_pk_bf16_f32 {vr(src)}, {vr(a)}, {vr(b2)}")
    A(f"s_mul_i32 s60, s3, {2*XN_PITCH}")
    A("v_add_u32 v2, s60, v2")
    for r in range(2):
        A(f"ds_write_b64 v2, {vr(XS+2*r,2)} offset:{L_XN+XN_PITCH*r}")
    lds_signal(F_XN, 8, 7)
    stamp(2)
    A("v_and_b32 v3, 7, v0"); A(f"v_mul_u32_u24 v3, {XN_PITCH}, v3"); A("v_lshl_add_u32 v3, v6, 4, v3")
    A("s_lshl_b32 s60, s3, 7"); A("v_add_u32 v3, s60, v3")
    A(f"v_mul_u32_u24 v2, {P1_PITCH}, v5"); A("v_lshl_add_u32 v2, v6, 4, v2")
    A(f"s_mul_i32 s60, s3, {P1_WAVE}"); A("v_add_u32 v2, s60, v2")
    A("v_cmp_gt_u32 s[74:75], 8, v5")
    A("v_and_b32 v4, 1, v6"); A("s_lshl_b32 s60, s3, 1"); A("v_add_u32 v4, s60, v4")
    A(f"v_mul_u32_u24 v1, {P1_PITCH}, v4"); A("v_lshl_add_u32 v1, v5, 2, v1")
    A("v_lshrrev_b32 v8, 5, v0")
    A(f"v_mul_u32_u24 v38, {P1_UNIT}, v8"); A("v_add_u32 v1, v1, v38")
    A(f"v_add_u32 v1, {L_P1}, v1")
    A("v_lshlrev_b32 v4, 14, v4"); A("v_lshl_add_u32 v4, v5, 4, v4"); A("v_lshl_add_u32 v4, v8, 19, v4")
    lds_wait(F_XN, 4, 8, 7, sleep=0)
    for kb in range(2):
        A(f"ds_read_b128 {vr(XOP+4*kb,4)}, v3 offset:{L_XN+64*kb}")

    def unit_mfma(wbase, acc, opt_, waits):
        for kb in range(2):
            A(f"s_waitcnt vmcnt({waits[kb]}) lgkmcnt(0)")
            wb = wbase + 16 * kb
            for j in range(4):
                op = opt_ + 4 * (j & 1)
                sel = "s58" if (j & 1) == 0 else "s59"
                dw = j >> 1
                for t in range(4):
                    A(f"v_perm_b32 {vr(op+t)}, {vr(wb+4*t+2+dw)}, {vr(wb+4*t+dw)}, {sel}")
                A("s_nop 1")
                c = "0" if kb == 0 else vr(acc + 4 * j, 4)
                A(f"v_mfma_f32_16x16x32_bf16 {vr(acc+4*j,4)}, {vr(op,4)}, {vr(XOP+4*kb,4)}, {c}")

    def unit_write(acc, unit):
        A("s_mov_b64 exec, s[74:75]")
        for j in range(4):
            A(f"ds_write_b128 v2, {vr(acc+4*j,4)} offset:{L_P1+P1_UNIT*unit+64*j}")
        A("s_mov_b64 exec, -1")

    def unit_reduce(unit0, R, mask, soff):
        A(f"s_mov_b64 exec, {mask}")
        for w in range(4):
            off = (P1_UNIT * unit0 + P1_WAVE * w) // 4
            A(f"v_add_u32 v8, {P1_UNIT*unit0 + P1_WAVE*w}, v1")
            A(f"ds_read2_b32 {vr(R+4*w,2)}, v8 offset0:0 offset1:16")
            A(f"ds_read2_b32 {vr(R+4*w+2,2)}, v8 offset0:32 offset1:48")
        A("s_waitcnt lgkmcnt(0)")
        for e in range(4):
            A(f"v_add_f32 {vr(R+e)}, {vr(R+e)}, {vr(R+4+e)}")
            A(f"v_add_f32 {vr(R+8+e)}, {vr(R+8+e)}, {vr(R+12+e)}")
        for e in range(4):
            A(f"v_add_f32 {vr(R+e)}, {vr(R+e)}, {vr(R+8+e)}")
        for e in range(4):
            A(f"v_min_u32 {vr(R+e)}, -2, {vr(R+e)}")
        A(f"buffer_store_dwordx4 {vr(R,4)}, v4, s[36:39], {soff} offen sc1")
        A("s_mov_b64 exec, -1")

    srd(52, "s24", "s25", 256)
    A("v_lshlrev_b32 v29, 2, v0")
    A("s_mov_b32 s72, 0x00010001"); A("s_mov_b32 s73, 0x00010001")
    unit_mfma(WQ, X, TMP, [8+touch, touch])
    A("s_mov_b64 exec, s[72:73]")
    A("buffer_load_dword v28, v29, s[52:55], 0 offen sc1")
    A("s_mov_b64 exec, -1")
    stamp(3)
    A("s_nop 7")
    unit_write(X, 0)
    lds_signal(F_P1, 8, 7)
    lds_wait(F_P1, 4, 8, 7, sleep=0)
    lds_wait(F_CL, 4, 8, 7, sleep=0)
    unit_reduce(0, WQ, "0xffffffff", "s66")
    stamp(4)
    A("s_lshr_b32 s60, s56, 2"); A("s_lshl_b32 s60, s60, 14")
    A("s_and_b32 s61, s56, 3"); A("s_lshl_b32 s61, s61, 12"); A("s_add_u32 s60, s60, s61")
    A("s_lshl_b32 s61, s3, 10"); A("s_add_u32 s81, s60, s61")
    for k in range(1, 4):
        A(f"s_add_u32 s{81+k}, s81, {P1_KQ*k}")
    A("v_lshlrev_b32 v26, 4, v0")
    A("v_lshrrev_b32 v3, 5, v0"); A("s_lshl_b32 s60, s3, 1"); A("v_add_u32 v3, s60, v3")
    A(f"v_mul_u32_u24 v3, {Q_PITCH}, v3"); A("v_and_b32 v27, 31, v0"); A("v_lshl_add_u32 v3, v27, 3, v3")
    A("s_mov_b32 s61, 0")
    A("s_waitcnt vmcnt(1)")
    A("s_mov_b64 exec, s[72:73]")
    A.label("L_cert1")
    A("v_cmp_ne_u32 vcc, 64, v28")
    A("s_add_u32 s61, s61, 1")
    A("s_cmp_ge_u32 s61, s62"); A("s_cbranch_scc1 L_cert1d")
    A("s_cbranch_vccz L_cert1d")
    A("buffer_load_dword v28, v29, s[52:55], 0 offen sc1")
    A("s_waitcnt vmcnt(0)")
    A("s_branch L_cert1")
    A.label("L_cert1d")
    A("s_mov_b64 exec, -1")
    stamp(14)
    def qloads():
        for k in range(4):
            A(f"buffer_load_dwordx4 {vr(10+4*k,4)}, v26, s[36:39], s{81+k} offen sc1")
    poll_loop(qloads, list(range(10, 26)), 8)
    for e in range(4):
        A(f"v_add_f32 {vr(10+e)}, {vr(10+e)}, {vr(14+e)}")
        A(f"v_add_f32 {vr(18+e)}, {vr(18+e)}, {vr(22+e)}")
    for e in range(4):
        A(f"v_add_f32 {vr(10+e)}, {vr(10+e)}, {vr(18+e)}")
    A("v_cvt_pk_bf16_f32 v10, v10, v11"); A("v_cvt_pk_bf16_f32 v11, v12, v13")
    A(f"ds_write_b64 v3, v[10:11] offset:{L_Q}")
    lds_signal(F_Q, 8, 7)
    stamp(6)
    srd(40, "s16", "s17", 0x700000)
    srd(44, "s18", "s19", 0x700000)
    A("v_mul_u32_u24 v3, 57344, v6"); A("v_lshl_add_u32 v3, v5, 3, v3")
    A("s_lshl_b32 s61, s65, 7"); A("s_mul_i32 s69, s67, 7168"); A("s_add_u32 s69, s69, s61")
    A("s_cmp_lt_u32 s65, 56"); A(f"s_cselect_b32 s69, s69, {OOB}")
    A("s_mov_b32 s68, s69")
    w_issue(WG, "v3", 40, 7168)
    A("s_mov_b32 s68, s69")
    w_issue(WU, "v3", 44, 7168)
    unit_mfma(WG, TMP, X, [24, 16])
    unit_mfma(WU, TMP + 16, X, [8, 0])
    stamp(15)
    A("s_nop 7")
    unit_write(TMP, 1)
    unit_write(TMP + 16, 2)
    lds_signal(F_P2, 8, 7)
    A(f"s_add_u32 s68, s66, {P1_MAT}")
    lds_wait(F_P2, 4, 8, 7, sleep=0)
    unit_reduce(1, WQ + 16, "-1", "s68")
    stamp(5)
    WO, WD, WOP, OD, STT, ACC2, GU = 40, 72, 104, 72, 26, 136, 104
    srd(40, "s12", "s13", 0x800000)
    srd(44, "s20", "s21", 0x700000)
    for i in range(32):
        A(f"v_mov_b32 {vr(WD+i)}, 0")
    for i in range(32):
        A(f"v_mov_b32 {vr(GU+i)}, 0")
    A("v_lshlrev_b32 v2, 14, v6"); A("v_lshl_add_u32 v2, v5, 4, v2")
    A("s_mul_i32 s60, s56, 112"); A("s_lshl_b32 s61, s3, 5"); A("s_add_u32 s74, s60, s61")
    A("s_lshl_b32 s60, s74, 11"); A("s_lshl_b32 s61, s57, 8"); A("s_add_u32 s60, s60, s61")
    A("s_cmp_eq_u32 s3, 3")
    A("s_cselect_b32 s77, 0, -1"); A("s_mov_b32 s76, -1")
    A("s_mov_b64 exec, s[76:77]")
    for i in range(8):
        A(f"buffer_load_dwordx4 {vr(WD+4*i,4)}, v2, s[44:47], s60 offen offset:{2048*(i&1)} nt")
        if i & 1:
            A("s_add_u32 s60, s60, 4096")
    A("s_mov_b64 exec, -1")
    A("v_lshlrev_b32 v3, 12, v6"); A("v_lshl_add_u32 v3, v5, 4, v3")
    A("s_lshl_b32 s60, s56, 2"); A("s_add_u32 s60, s60, s3"); A("s_lshl_b32 s60, s60, 16"); A("s_add_u32 s60, s60, s61")
    for i4 in range(4):
        for hi in range(2):
            i = i4 + 4 * hi
            A(f"buffer_load_dwordx4 {vr(WO+4*i,4)}, v3, s[40:43], s60 offen offset:{2048*hi} nt")
        A("s_add_u32 s60, s60, 16384")
    A("s_and_b32 s78, s56, 7"); A("s_lshr_b32 s79, s56, 3")
    A("s_lshl_b32 s80, s78, 11"); A("s_lshl_b32 s60, s57, 8"); A("s_add_u32 s80, s80, s60"); A("s_lshl_b32 s60, s79, 6"); A("s_add_u32 s80, s80, s60")
    A("v_lshlrev_b32 v4, 1, v0")
    A("buffer_load_ushort v38, v4, s[32:35], s80 offen")
    A("v_and_b32 v2, 7, v0"); A("v_bfe_u32 v3, v0, 3, 1")
    A("v_lshlrev_b32 v1, 14, v2"); A("v_lshl_add_u32 v1, v3, 18, v1"); A("v_lshl_add_u32 v1, v6, 5, v1")
    A("s_lshl_b32 s60, s74, 2")
    for m in range(2):
        for k in range(2):
            A(f"s_add_u32 s{81+2*m+k}, s60, {P1_MAT*(m+1) + P1_KQ*k}")
    def guloads():
        for m in range(2):
            for k in range(2):
                for h in range(2):
                    A(f"buffer_load_dwordx4 {vr(GU+16*m+8*k+4*h,4)}, v1, s[36:39], s{81+2*m+k} offen offset:{16*h} sc1")
    poll_loop(guloads, list(range(GU, GU + 32)), 8, "s[76:77]")
    stamp(7)
    ROR = "row_ror:8 row_mask:0xf bank_mask:0xf"
    for m in range(2):
        for i in range(8):
            A(f"v_add_f32 {vr(GU+16*m+i)}, {vr(GU+16*m+i)}, {vr(GU+16*m+8+i)}")
    for m in range(2):
        for i in range(8):
            A(f"v_add_f32_dpp {vr(GU+16*m+i)}, {vr(GU+16*m+i)}, {vr(GU+16*m+i)} {ROR}")
    A("s_mov_b32 s60, 0x3d372713")
    A("s_mov_b32 s61, 0xc0135761")
    HOPR = 34
    for i in range(4):
        g0, g1, u0, u1, z0, z1 = 18, 19, 20, 21, 22, 23
        A(f"v_cvt_pk_bf16_f32 {vr(z0)}, {vr(GU+2*i)}, {vr(GU+2*i+1)}")
        A(f"v_cvt_pk_bf16_f32 {vr(z1)}, {vr(GU+16+2*i)}, {vr(GU+16+2*i+1)}")
        A(f"v_lshlrev_b32 {vr(g0)}, 16, {vr(z0)}"); A(f"v_and_b32 {vr(g1)}, 0xffff0000, {vr(z0)}")
        A(f"v_lshlrev_b32 {vr(u0)}, 16, {vr(z1)}"); A(f"v_and_b32 {vr(u1)}, 0xffff0000, {vr(z1)}")
        for g, z in ((g0, z0), (g1, z1)):
            A(f"v_mul_f32 {vr(z)}, {vr(g)}, {vr(g)}")
            A(f"v_mul_f32 {vr(z)}, s60, {vr(z)}")
            A(f"v_fma_f32 {vr(z)}, {vr(z)}, {vr(g)}, {vr(g)}")
            A(f"v_mul_f32 {vr(z)}, s61, {vr(z)}")
            A(f"v_exp_f32 {vr(z)}, {vr(z)}")
            A("s_nop 0")
            A(f"v_add_f32 {vr(z)}, 1.0, {vr(z)}")
            A(f"v_rcp_f32 {vr(z)}, {vr(z)}")
            A("s_nop 0")
            A(f"v_mul_f32 {vr(g)}, {vr(g)}, {vr(z)}")
        A(f"v_cvt_pk_bf16_f32 {vr(z0)}, {vr(g0)}, {vr(g1)}")
        A(f"v_lshlrev_b32 {vr(g0)}, 16, {vr(z0)}"); A(f"v_and_b32 {vr(g1)}, 0xffff0000, {vr(z0)}")
        A(f"v_mul_f32 {vr(g0)}, {vr(g0)}, {vr(u0)}"); A(f"v_mul_f32 {vr(g1)}, {vr(g1)}, {vr(u1)}")
        A(f"v_cvt_pk_bf16_f32 {vr(HOPR+i)}, {vr(g0)}, {vr(g1)}")
    for j in range(8):
        op = 10 + 4 * (j & 1)
        sel = "s58" if (j & 1) == 0 else "s59"
        dw = j >> 1
        for t in range(4):
            A(f"v_perm_b32 {vr(op+t)}, {vr(WD+8*t+4+dw)}, {vr(WD+8*t+dw)}, {sel}")
        A("s_nop 1")
        A(f"v_mfma_f32_16x16x32_bf16 {vr(ACC2+4*j,4)}, {vr(op,4)}, {vr(HOPR,4)}, 0")
    for j in range(8):
        sel = "s58" if (j & 1) == 0 else "s59"
        dw = j >> 1
        for t in range(4):
            A(f"v_perm_b32 {vr(WOP+4*j+t)}, {vr(WO+8*t+4+dw)}, {vr(WO+8*t+dw)}, {sel}")
    A("v_lshlrev_b32 v4, 17, v2"); A("v_lshl_add_u32 v4, v3, 14, v4"); A("v_lshl_add_u32 v4, v6, 5, v4")
    A("s_lshl_b32 s60, s79, 15"); A("s_lshl_b32 s61, s78, 9"); A("s_add_u32 s60, s60, s61"); A("s_lshl_b32 s61, s3, 7"); A("s_add_u32 s60, s60, s61")
    A(f"s_add_u32 s81, s60, {WS_OP}")
    for s_ in range(1, 4):
        A(f"s_add_u32 s{81+s_}, s81, {4096*s_}")
    A("v_lshlrev_b32 v2, 11, v2"); A("v_lshl_add_u32 v2, v3, 5, v2")
    A("s_lshl_b32 s60, s79, 9"); A("s_lshl_b32 s61, s78, 6"); A("s_add_u32 s60, s60, s61"); A(f"s_add_u32 s85, s60, {WS_ST}")
    A(f"s_mov_b32 s69, 0x{LOG2E:x}")
    stamp(8)
    lds_wait(F_O, 4, 8, 7, sleep=4)
    stamp(9)
    def h1loads():
        A(f"buffer_load_dwordx4 {vr(STT,4)}, v2, s[36:39], s85 offen sc1")
        A(f"buffer_load_dwordx4 {vr(STT+4,4)}, v2, s[36:39], s85 offen offset:16 sc1")
        for s_ in range(4):
            A(f"buffer_load_dwordx4 {vr(OD+8*s_,4)}, v4, s[36:39], s{81+s_} offen sc1")
            A(f"buffer_load_dwordx4 {vr(OD+8*s_+4,4)}, v4, s[36:39], s{81+s_} offen offset:16 sc1")
    if opt.get("h1pre", 1):
        def h1pre():
            A(f"buffer_load_dwordx4 {vr(STT,4)}, v2, s[36:39], s85 offen sc1")
            A(f"buffer_load_dwordx4 {vr(STT+4,4)}, v2, s[36:39], s85 offen offset:16 sc1")
        poll_loop(h1pre, list(range(STT, STT + 8)), 8, "0xffff")
    poll_loop(h1loads, list(range(STT, STT + 8)) + list(range(OD, OD + 32)), 8)
    stamp(10)
    A(f"v_max3_f32 v10, {vr(STT)}, {vr(STT+2)}, {vr(STT+4)}")
    A(f"v_max_f32 v10, v10, {vr(STT+6)}")
    A("s_nop 1")
    A(f"v_max_f32_dpp v10, v10, v10 {ROR}")
    for s_ in range(4):
        A(f"v_sub_f32 {vr(STT+2*s_)}, {vr(STT+2*s_)}, v10")
    for s_ in range(4):
        A(f"v_mul_f32 {vr(STT+2*s_)}, s69, {vr(STT+2*s_)}")
    for s_ in range(4):
        A(f"v_exp_f32 {vr(STT+2*s_)}, {vr(STT+2*s_)}")
    A("s_nop 0")
    A(f"v_mul_f32 v11, {vr(STT)}, {vr(STT+1)}")
    for s_ in range(1, 4):
        A(f"v_fmac_f32 v11, {vr(STT+2*s_)}, {vr(STT+2*s_+1)}")
    A("s_nop 1")
    A(f"v_add_f32_dpp v11, v11, v11 {ROR}")
    A("v_rcp_f32 v11, v11")
    for i in range(8):
        A(f"v_mul_f32 {vr(12+i)}, {vr(STT)}, {vr(OD+i)}")
    for s_ in range(1, 4):
        for i in range(8):
            A(f"v_fmac_f32 {vr(12+i)}, {vr(STT+2*s_)}, {vr(OD+8*s_+i)}")
    A("s_nop 1")
    for i in range(8):
        A(f"v_add_f32_dpp {vr(12+i)}, {vr(12+i)}, {vr(12+i)} {ROR}")
    for i in range(8):
        A(f"v_mul_f32 {vr(12+i)}, {vr(12+i)}, v11")
    for i in range(4):
        A(f"v_cvt_pk_bf16_f32 {vr(20+i)}, {vr(12+2*i)}, {vr(13+2*i)}")
    A("s_nop 1")
    for j in range(8):
        A(f"v_mfma_f32_16x16x32_bf16 {vr(ACC2+4*j,4)}, {vr(WOP+4*j,4)}, v[20:23], {vr(ACC2+4*j,4)}")
    A(f"v_mul_u32_u24 v3, {O_PITCH}, v5"); A("v_lshl_add_u32 v3, v6, 7, v3")
    A(f"s_mul_i32 s60, s3, {O_SLAB}"); A(f"s_add_u32 s60, s60, {L_T}"); A("v_add_u32 v3, s60, v3")
    A("v_cmp_gt_u32 vcc, 8, v5"); A("s_and_b64 exec, exec, vcc")
    A("s_nop 4")
    for j in range(8):
        A(f"ds_write_b128 v3, {vr(ACC2+4*j,4)} offset:{16*j}")
    A("s_mov_b64 exec, -1")
    A("v_lshrrev_b32 v3, 5, v0"); A("s_lshl_b32 s60, s3, 1"); A("v_add_u32 v3, s60, v3")
    A("v_and_b32 v4, 31, v0")
    A(f"v_mul_u32_u24 v8, {O_PITCH}, v3"); A("v_lshl_add_u32 v8, v4, 4, v8"); A(f"v_add_u32 v8, {L_T}, v8")
    A("v_lshlrev_b32 v3, 9, v3"); A("v_lshl_add_u32 v3, v4, 4, v3")
    A("s_lshl_b32 s61, s57, 5"); A("s_add_u32 s61, s61, s56"); A("s_lshl_b32 s61, s61, 12"); A(f"s_add_u32 s61, s61, {WS_FP}")
    A("s_waitcnt lgkmcnt(0)")
    A("s_barrier")
    for w in range(4):
        A(f"ds_read_b128 {vr(12+4*w,4)}, v8 offset:{O_SLAB*w}")
    A("s_waitcnt lgkmcnt(0)")
    for r in range(4):
        A(f"v_add_f32 {vr(12+r)}, {vr(12+r)}, {vr(16+r)}")
        A(f"v_add_f32 {vr(20+r)}, {vr(20+r)}, {vr(24+r)}")
    for r in range(4):
        A(f"v_add_f32 {vr(12+r)}, {vr(12+r)}, {vr(20+r)}")
    for r in range(4):
        A(f"v_min_u32 {vr(12+r)}, -2, {vr(12+r)}")
    A("buffer_store_dwordx4 v[12:15], v3, s[36:39], s61 offen sc1")
    stamp(11)
    A("s_cmp_lg_u32 s3, 0"); A("s_cbranch_scc1 L_Gexit")
    A("v_lshrrev_b32 v2, 3, v0"); A("v_and_b32 v3, 7, v0")
    A("v_lshlrev_b32 v4, 14, v2"); A("v_lshl_add_u32 v4, v3, 4, v4")
    A("s_lshl_b32 s60, s57, 17"); A("s_lshl_b32 s61, s78, 9"); A("s_add_u32 s60, s60, s61"); A("s_lshl_b32 s61, s79, 7"); A("s_add_u32 s60, s60, s61")
    A(f"s_add_u32 s81, s60, {WS_FP}")
    for s_ in range(1, 4):
        A(f"s_add_u32 s{81+s_}, s81, {4096*s_}")
    srd(48, "s22", "s23", 16384)
    def h2loads():
        for t in range(4):
            A(f"buffer_load_dwordx4 {vr(40+4*t,4)}, v4, s[36:39], s{81+t} offen sc1")
    poll_loop(h2loads, list(range(40, 56)), 8)
    stamp(12)
    for r in range(4):
        A(f"v_add_f32 {vr(40+r)}, {vr(40+r)}, {vr(44+r)}")
        A(f"v_add_f32 {vr(48+r)}, {vr(48+r)}, {vr(52+r)}")
    for r in range(4):
        A(f"v_add_f32 {vr(40+r)}, {vr(40+r)}, {vr(48+r)}")
    A("s_nop 1")
    for r in range(4):
        A(f"v_add_f32_dpp {vr(40+r)}, {vr(40+r)}, {vr(40+r)} {ROR}")
    xrow_reduce("v_add_f32", [40, 41, 42, 43], list(range(44, 52)))
    for r in range(1, 4):
        A(f"v_cmp_eq_u32 vcc, {r}, v2")
        A("s_nop 1")
        A(f"v_cndmask_b32 v40, v40, {vr(40+r)}, vcc")
    A("v_lshlrev_b32 v38, 16, v38")
    A("v_add_f32 v40, v40, v38")
    A("v_cvt_pk_bf16_f32 v40, v40, v40")
    A("v_lshlrev_b32 v4, 1, v0")
    A("s_mov_b64 exec, 0xffffffff")
    A("buffer_store_short v40, v4, s[48:51], s80 offen")
    A("s_mov_b64 exec, -1")
    A.label("L_Gexit")
    stamp(13)
    stamp_flush("G")
    A.label("L_end")
    A("s_endpgm")

    Ft = ['.section .rodata,"a"', ".p2align 6", f".amdhsa_kernel {NAME}",
          "  .amdhsa_next_free_vgpr 256", "  .amdhsa_next_free_sgpr 96", "  .amdhsa_accum_offset 256",
          "  .amdhsa_group_segment_fixed_size 0", "  .amdhsa_kernarg_size 96", "  .amdhsa_user_sgpr_count 2",
          "  .amdhsa_user_sgpr_kernarg_segment_ptr 1", "  .amdhsa_system_sgpr_workgroup_id_x 1", ".end_amdhsa_kernel"]
    return "\n".join(H + A.L + Ft) + "\n"


if __name__ == "__main__":
    out = sys.argv[1] if len(sys.argv) > 1 else "k.s"
    opt = {}
    for a in sys.argv[2:]:
        k, v = a.split("=")
        opt[k] = int(v)
    open(out, "w").write(gen(opt))
```

```python
import sys

NAME = "parallel_sum__gqa_block_cached__glu_gated_geglu__decode_kernel"

WS_P1, P1_MAT, P1_KQ, P1_B = 0x0, 0x80000, 0x20000, 0x4000
WS_ST, WS_TK, WS_OP, WS_FP, WS_DBG = 0x180000, 0x190000, 0x200000, 0x300000, 0x400000
WS_SIZE = 0x10000000
WS_GU, WS_H = 0x80000, 0x1A0000
MB_SH = 8
L_FLAG = 0x0
F_XN, F_P1, F_Q, F_O, F_P2, F_TK, F_CL, F_C1, F_W, F_H1 = 0, 4, 8, 12, 16, 20, 24, 28, 32, 36
L_XN, XN_PITCH = 0x100, 528
L_P1, P1_PITCH = 0x1200, 320
P1_WAVE, P1_UNIT = 8 * 320, 4 * 8 * 320
L_Q, Q_PITCH = 0x8A00, 288
L_ST = 0x9400
L_O, O_SLAB, O_PITCH = 0x9800, 8 * 528, 528
L_T = L_O + 4 * O_SLAB
LDS_BYTES = L_T + 4 * O_SLAB
SPIN_MAX = 20000
OOB = 0x7ff00000

LOG2E = 0x3FB8AA3B
SCALE = 0x3DB504F3


class Asm:
    def __init__(self):
        self.L = []
        self.uid = 0
    def __call__(self, s):
        if s == "s_mov_b64 exec, 0xffffffff":
            self.L.append("    s_mov_b32 exec_lo, -1"); self.L.append("    s_mov_b32 exec_hi, 0")
            return
        self.L.append("    " + s)
    def label(self, s):
        self.L.append(s + ":")
    def new(self, p="L"):
        self.uid += 1
        return f"{p}_{self.uid}"
    def c(self, s):
        self.L.append("    ; " + s)


def vr(a, n=1):
    return f"v{a}" if n == 1 else f"v[{a}:{a+n-1}]"


def gen(opt):
    A = Asm()
    stamps = opt.get("stamps", False)
    psleep = opt.get("psleep", 2)

    def stamp(idx):
        if not stamps:
            return
        A("s_memrealtime s[90:91]")
        A("s_waitcnt lgkmcnt(0)")
        A(f"v_writelane_b32 v9, s90, {idx}")

    def stamp_flush(role="A"):
        if not stamps:
            return
        if opt.get("dbg", 0):
            m = {"A": [(0, 1, 1), (0, 2, 0), (2, 3, 0), (3, 4, 0), (3, 5, 1), (4, 12, 0)],
                 "G": [(0, 1, 1), (0, 2, 0), (4, 6, 0), (6, 7, 0), (10, 8, 0), (11, 9, 0), (12, 10, 0), (13, 11, 0), (3, 13, 0), (14, 14, 0), (9, 15, 0)]}[role]
            A("v_mov_b32 v8, 0")
            mask = 0
            for (src, dst, inv) in m:
                A(f"v_readlane_b32 s92, v9, {src}")
                A("s_nop 3")
                if inv:
                    A("s_not_b32 s92, s92")
                A(f"v_writelane_b32 v8, s92, {dst}")
                mask |= 1 << dst
            A(f"s_mov_b64 exec, 0x{mask:x}")
            A("v_lshlrev_b32 v9, 2, v0")
            if opt["dbg"] == 1:
                A("buffer_atomic_umax v8, v9, s[52:55], 0 offen")
            else:
                A("ds_max_u32 v9, v8 offset:64")
                if role == "G":
                    A("s_cmp_lg_u32 s3, 0"); A("s_cbranch_scc1 L_nodbg")
                    A("s_mov_b64 exec, 0xfffe")
                    A("v_lshlrev_b32 v9, 2, v0")
                    A("s_waitcnt lgkmcnt(0)")
                    A("ds_read_b32 v8, v9 offset:64")
                    A("s_waitcnt lgkmcnt(0)")
                    A("buffer_atomic_umax v8, v9, s[52:55], 0 offen")
                    A.label("L_nodbg")
            A("s_mov_b64 exec, -1")
            return
        A("s_lshl_b32 s92, s2, 4"); A("s_add_u32 s92, s92, s3"); A("s_lshl_b32 s92, s92, 6")
        A(f"s_add_u32 s92, s92, {WS_DBG}")
        A("s_mov_b64 exec, 0xffff")
        A("v_lshlrev_b32 v8, 2, v0")
        A("buffer_store_dword v9, v8, s[36:39], s92 offen")
        A("s_mov_b64 exec, -1")

    def srd(d, lo, hi, size):
        A(f"s_mov_b32 s{d}, {lo}"); A(f"s_mov_b32 s{d+1}, {hi}")
        A(f"s_mov_b32 s{d+2}, {size}"); A(f"s_mov_b32 s{d+3}, 0x00020000")

    def lds_wait(flag, count, vt, va, sleep=1):
        l = A.new("Llw"); d = A.new("Llwd")
        A.label(l)
        A(f"ds_read_b32 {vr(vt)}, {vr(va)} offset:{L_FLAG+flag}")
        A("s_waitcnt lgkmcnt(0)")
        A(f"v_readfirstlane_b32 s60, {vr(vt)}")
        A(f"s_cmp_ge_u32 s60, {count}")
        A(f"s_cbranch_scc1 {d}")
        if sleep:
            A(f"s_sleep {sleep}")
        A(f"s_branch {l}")
        A.label(d)

    def lds_signal(flag, vt, va):
        A("s_waitcnt lgkmcnt(0)")
        A("s_mov_b64 exec, 1")
        A(f"v_mov_b32 {vr(vt)}, 1")
        A(f"ds_add_u32 {vr(va)}, {vr(vt)} offset:{L_FLAG+flag}")
        A("s_mov_b64 exec, -1")

    def xrow_reduce(op, vs, ts):
        for sw in ("v_permlane16_swap_b32", "v_permlane32_swap_b32"):
            for i, v in enumerate(vs):
                A(f"v_mov_b32 {vr(ts[2*i])}, {vr(v)}")
                A(f"v_mov_b32 {vr(ts[2*i+1])}, {vr(v)}")
            A("s_nop 1")
            for i, v in enumerate(vs):
                A(f"{sw} {vr(ts[2*i])}, {vr(ts[2*i+1])}")
            A("s_nop 1")
            for i, v in enumerate(vs):
                A(f"{op} {vr(v)}, {vr(ts[2*i])}, {vr(ts[2*i+1])}")

    def row_reduce_add(vs):
        for ctl in ("quad_perm:[1,0,3,2]", "quad_perm:[2,3,0,1]", "row_half_mirror", "row_mirror"):
            if len(vs) < 3:
                A("s_nop 1")
            for v in vs:
                A(f"v_add_f32_dpp {vr(v)}, {vr(v)}, {vr(v)} {ctl} row_mask:0xf bank_mask:0xf")

    def bf16r(v, t):
        A(f"v_cvt_pk_bf16_f32 {vr(t)}, {vr(v)}, {vr(v)}")
        A(f"v_lshlrev_b32 {vr(v)}, 16, {vr(t)}")

    def sentinel_pending(regs, vt):
        A(f"v_max3_u32 {vr(vt)}, {vr(regs[0])}, {vr(regs[1])}, {vr(regs[2])}")
        rest = regs[3:]
        while len(rest) >= 2:
            A(f"v_max3_u32 {vr(vt)}, {vr(vt)}, {vr(rest[0])}, {vr(rest[1])}")
            rest = rest[2:]
        if rest:
            A(f"v_max_u32 {vr(vt)}, {vr(vt)}, {vr(rest[0])}")
        A(f"v_cmp_eq_u32 vcc, -1, {vr(vt)}")

    def poll_loop(loads, regs, vt, mask="-1", sleep=None):
        psl = psleep if sleep is None else sleep
        l = A.new("Lpoll"); d = A.new("Lpolld"); f = A.new("Lpollf")
        A(f"s_mov_b64 exec, {mask}")
        A("s_mov_b32 s61, 0")
        A(f"s_branch {f}")
        A.label(l)
        if psl:
            A(f"s_sleep {psl}")
        A.label(f)
        loads()
        A("s_waitcnt vmcnt(0)")
        sentinel_pending(regs, vt)
        A("s_add_u32 s61, s61, 1")
        A(f"s_cmp_ge_u32 s61, s62")
        A(f"s_cbranch_scc1 {d}")
        A("s_and_b64 exec, exec, vcc")
        A(f"s_cbranch_scc1 {l}")
        A.label(d)
        A("s_mov_b64 exec, -1")

    H = []
    H.append(f"; @launch grid=(256,1,1) block=(512,1,1) lds={LDS_BYTES}")
    H.append('.amdgcn_target "amdgcn-amd-amdhsa--gfx950"')
    H.append(".text"); H.append(f".globl {NAME}"); H.append(".p2align 8"); H.append(f".type {NAME},@function")
    H.append(f"{NAME}:")

    A("s_cmp_ge_u32 s2, 256")
    A("s_cbranch_scc1 L_end")
    A("s_load_dwordx16 s[4:19], s[0:1], 0")
    A("s_load_dwordx8 s[20:27], s[0:1], 64")
    A("v_lshrrev_b32 v1, 6, v0")
    A("v_and_b32 v0, 63, v0")
    A("v_mov_b32 v9, 0")
    A("v_readfirstlane_b32 s3, v1")
    A("v_lshlrev_b32 v3, 2, v0")
    A("s_lshr_b32 s56, s2, 3")
    A("s_and_b32 s57, s2, 7")
    A(f"s_mov_b32 s62, {SPIN_MAX}")
    A("s_mov_b32 s58, 0x05040100")
    A("s_mov_b32 s59, 0x07060302")
    A("s_and_b32 s64, s2, 3")
    A("s_and_b32 s63, s56, 3"); A("s_lshl_b32 s65, s63, 4"); A("s_lshr_b32 s60, s56, 2"); A("s_lshl_b32 s60, s60, 1"); A("s_add_u32 s65, s65, s60")
    A("s_lshr_b32 s60, s57, 2"); A("s_add_u32 s65, s65, s60")
    A("s_lshl_b32 s66, s64, 17"); A("s_lshl_b32 s60, s65, 8"); A("s_add_u32 s66, s66, s60")
    A("s_lshr_b32 s60, s2, 2"); A("s_lshl_b32 s61, s64, 1"); A("s_add_u32 s89, s60, 6"); A("s_sub_u32 s89, s89, s61")
    A("s_and_b32 s61, s89, 7"); A("s_lshr_b32 s89, s89, 3"); A("s_sub_u32 s89, s60, s89")
    A("s_cmp_eq_u32 s61, 7"); A("s_cselect_b32 s89, 63, s89")
    A("s_lshl_b32 s93, s64, 10"); A("s_lshl_b32 s60, s89, 14"); A("s_add_u32 s93, s93, s60"); A(f"s_add_u32 s93, s93, {WS_GU}")
    A("s_lshl_b32 s95, s89, 2"); A("s_add_u32 s95, s95, s64")
    A("v_and_b32 v5, 15, v0"); A("v_lshrrev_b32 v6, 4, v0")
    A("v_mov_b32 v7, 0")
    A("s_cmp_lg_u32 s3, 4")
    A("s_cbranch_scc1 L_noz")
    A("ds_write_b32 v3, v9")
    A(f"v_mov_b32 v8, {3*(3+opt.get('nx',2))}")
    A(f"ds_write_b32 v7, v8 offset:{L_FLAG+F_TK}")
    A.label("L_noz")
    A("s_waitcnt lgkmcnt(0)")
    A("s_barrier")
    srd(36, "s26", "s27", WS_SIZE)
    if opt.get("pad", 0):
        A("s_memrealtime s[94:95]")
        A("s_waitcnt lgkmcnt(0)")
    stamp(0)
    A("s_cmp_lt_u32 s3, 4")
    A("s_cbranch_scc1 L_G")

    vK, vV, vM, vL = 1, 2, 3, 4
    T = [5, 6, 7, 8]
    S, P, VOP, Q, O, BUF = 10, 14, 16, 24, 40, 72
    NB, NX = 3, opt.get("nx", 2)
    TK = 84
    A.c("---------------- attention waves")
    def tk_req():
        A("s_mov_b64 exec, 1")
        A(f"ds_add_rtn_u32 v23, v21, v22 offset:{L_FLAG+F_TK}")
        A("s_mov_b64 exec, -1")
    A("s_setprio 3")
    for i in range(4):
        A(f"v_mov_b32 {vr(O+i)}, -1")
    A("s_sub_u32 s64, s3, 4")
    A("v_lshlrev_b32 v2, 14, v6"); A("v_lshl_add_u32 v2, v5, 4, v2")
    A("v_lshlrev_b32 v1, 4, v0")
    A("v_mov_b32 v22, 1"); A("v_mov_b32 v21, 0"); A("v_mov_b32 v20, 1")
    A(f"s_lshl_b32 s72, s2, {MB_SH}"); A(f"s_add_u32 s72, s72, {WS_TK}")
    if opt.get("noclr", 0):
        A("s_branch L_clrd")
    def clr(n, v, soff, imm=0):
        A(f"buffer_store_dword{n} {vr(O, 4 if n == 'x4' else 2)}, {v}, s[36:39], {soff} offen offset:{imm} sc1")
    A("s_cmp_eq_u32 s64, 3"); A("s_cbranch_scc1 L_clr3")
    A("s_cmp_lg_u32 s64, 0"); A("s_cbranch_scc1 L_clr12")
    A(f"s_add_u32 s71, s66, {4*P1_B}")
    clr("x4", "v2", "s66"); clr("x4", "v2", "s71")
    A("s_mov_b64 exec, 1")
    clr("x2", "v21", "s72")
    A("s_mov_b64 exec, -1")
    A("s_branch L_clrd")
    A.label("L_clr12")
    A("s_lshl_b32 s60, s64, 13"); A("s_add_u32 s70, s93, s60"); A("s_sub_u32 s70, s70, 8192"); A("s_add_u32 s71, s70, 4096")
    clr("x4", "v1", "s70"); clr("x4", "v1", "s71")
    A("s_lshl_b32 s61, s64, 11"); A("s_lshl_b32 s60, s2, 12"); A("s_add_u32 s60, s60, s61"); A(f"s_add_u32 s71, s60, {WS_OP-2048}")
    clr("x4", "v1", "s71"); clr("x4", "v1", "s71", 1024)
    A("s_lshl_b32 s60, s95, 8"); A("s_lshl_b32 s61, s64, 7"); A("s_add_u32 s60, s60, s61"); A(f"s_add_u32 s60, s60, {WS_H-128}")
    A("s_mov_b64 exec, 0xff")
    clr("x4", "v1", "s60")
    A("s_mov_b64 exec, -1")
    A("s_branch L_clrd")
    A.label("L_clr3")
    A("s_lshl_b32 s60, s56, 11"); A("s_lshl_b32 s61, s57, 3"); A("s_add_u32 s60, s60, s61"); A(f"s_add_u32 s60, s60, {WS_ST}")
    A("v_lshlrev_b32 v2, 8, v0")
    A("s_mov_b64 exec, 0xff")
    clr("x2", "v2", "s60")
    A("s_mov_b64 exec, -1")
    A("s_lshl_b32 s60, s57, 5"); A("s_add_u32 s60, s60, s56"); A("s_lshl_b32 s60, s60, 12"); A(f"s_add_u32 s71, s60, {WS_FP}")
    for i in range(4):
        clr("x4", "v1", "s71", 1024 * i)
    A.label("L_clrd")
    srd(52, "s24", "s25", 256)
    A("s_and_b32 s73, s56, 3"); A("s_lshl_b32 s73, s73, 6")
    A("s_lshl_b32 s63, s56, 21")
    A("s_add_u32 s28, s6, s63"); A("s_addc_u32 s29, s7, 0"); A("s_mov_b32 s30, 0x200000"); A("s_mov_b32 s31, 0x00020000")
    A("s_add_u32 s32, s8, s63"); A("s_addc_u32 s33, s9, 0"); A("s_mov_b32 s34, 0x200000"); A("s_mov_b32 s35, 0x00020000")
    A(f"v_lshlrev_b32 {vr(vK)}, 8, v5"); A(f"v_lshl_add_u32 {vr(vK)}, v6, 4, {vr(vK)}")
    A(f"v_lshlrev_b32 {vr(vV)}, 10, v6"); A(f"v_lshl_add_u32 {vr(vV)}, v5, 4, {vr(vV)}")
    A("s_lshl_b32 s65, s57, 18")

    def a_issue(b, first=False):
        sk = A.new("Lnoiss")
        if first:
            A(f"s_add_u32 s{TK+b}, s64, {3*b-1}")
            A(f"s_lshl_b32 s68, s{TK+b}, 12"); A("s_add_u32 s68, s68, s65")
        else:
            A("s_waitcnt lgkmcnt(0)")
            A(f"v_readfirstlane_b32 s{TK+b}, v23")
            tk_req()
            A(f"s_lshl_b32 s68, s{TK+b}, 12"); A("s_add_u32 s68, s68, s65")
            A(f"s_cmp_ge_u32 s{TK+b}, 64")
            A(f"s_cbranch_scc1 {sk}")
        for j in range(4):
            A(f"buffer_load_dwordx4 {vr(BUF+32*b+4*j,4)}, {vr(vK)}, s[28:31], s68 offen offset:{64*j} nt")
        for j in range(4):
            A(f"buffer_load_dwordx4 {vr(BUF+32*b+16+4*j,4)}, {vr(vV)}, s[32:35], s68 offen offset:{256*j} nt")
        A.label(sk)

    def a_wait(b, base):
        if b >= NB:
            d = A.new("Lw")
            A(f"s_waitcnt vmcnt({base + 8*(NB+NX-1-b) + 8*NB})")
            A(f"s_cmp_lt_u32 s{TK+NB-1}, 64"); A(f"s_cbranch_scc1 {d}")
            A(f"s_waitcnt vmcnt(0)")
            A.label(d)
            return
        d = A.new("Lw")
        A(f"s_waitcnt vmcnt({base+16})")
        A(f"s_cmp_lt_u32 s{TK+(b+2)%3}, 64"); A(f"s_cbranch_scc1 {d}")
        A(f"s_waitcnt vmcnt({base+8})")
        A(f"s_cmp_lt_u32 s{TK+(b+1)%3}, 64"); A(f"s_cbranch_scc1 {d}")
        A(f"s_waitcnt vmcnt({base})")
        A.label(d)

    def a_proc(b):
        kb = BUF + 32 * b; vb = kb + 16
        a_wait(b, 4)
        if opt.get("noproc", 0):
            a_wait(b, 0)
            return
        A(f"v_mfma_f32_16x16x32_bf16 {vr(S,4)}, {vr(kb,4)}, {vr(Q,4)}, 0")
        for j in range(1, 4):
            A(f"v_mfma_f32_16x16x32_bf16 {vr(S,4)}, {vr(kb+4*j,4)}, {vr(Q+4*j,4)}, {vr(S,4)}")
        A("s_nop 7")
        t0, t1, t2, t3 = T
        for rnd in range(2):
            A(f"v_cvt_pk_bf16_f32 {vr(t0)}, {vr(S)}, {vr(S+1)}")
            A(f"v_cvt_pk_bf16_f32 {vr(t1)}, {vr(S+2)}, {vr(S+3)}")
            A(f"v_lshlrev_b32 {vr(S)}, 16, {vr(t0)}")
            A(f"v_and_b32 {vr(S+1)}, 0xffff0000, {vr(t0)}")
            A(f"v_lshlrev_b32 {vr(S+2)}, 16, {vr(t1)}")
            A(f"v_and_b32 {vr(S+3)}, 0xffff0000, {vr(t1)}")
            if rnd == 0:
                for r in range(4):
                    A(f"v_mul_f32 {vr(S+r)}, s70, {vr(S+r)}")
        A(f"v_max3_f32 {vr(t2)}, {vr(S)}, {vr(S+1)}, {vr(S+2)}")
        A(f"v_max3_f32 {vr(t2)}, {vr(t2)}, {vr(S+3)}, {vr(vM)}")
        xrow_reduce("v_max_f32", [t2], [t0, t1])
        A(f"v_sub_f32 {vr(t3)}, {vr(vM)}, {vr(t2)}")
        A(f"v_mul_f32 {vr(t3)}, s69, {vr(t3)}")
        A(f"v_exp_f32 {vr(t3)}, {vr(t3)}")
        A(f"v_mov_b32 {vr(vM)}, {vr(t2)}")
        A(f"v_mul_f32 {vr(t2)}, s69, {vr(t2)}")
        for r in range(4):
            A(f"v_fma_f32 {vr(S+r)}, {vr(S+r)}, s69, -{vr(t2)}")
        for r in range(4):
            A(f"v_exp_f32 {vr(S+r)}, {vr(S+r)}")
        A(f"v_mul_f32 {vr(vL)}, {vr(vL)}, {vr(t3)}")
        A(f"v_add_f32 {vr(t0)}, {vr(S)}, {vr(S+1)}")
        A(f"v_add_f32 {vr(t1)}, {vr(S+2)}, {vr(S+3)}")
        A(f"v_cvt_pk_bf16_f32 {vr(P)}, {vr(S)}, {vr(S+1)}")
        A(f"v_cvt_pk_bf16_f32 {vr(P+1)}, {vr(S+2)}, {vr(S+3)}")
        A(f"v_add_f32 {vr(vL)}, {vr(vL)}, {vr(t0)}")
        A(f"v_add_f32 {vr(vL)}, {vr(vL)}, {vr(t1)}")
        sk = A.new("Lnors")
        A(f"v_cmp_neq_f32 vcc, 1.0, {vr(t3)}")
        A("s_cbranch_vccz " + sk)
        for i in range(32):
            A(f"v_mul_f32 {vr(O+i)}, {vr(O+i)}, {vr(t3)}")
        A.label(sk)
        a_wait(b, 0)
        for j in range(8):
            op = VOP + 2 * (j & 1)
            sel = "s58" if (j & 1) == 0 else "s59"
            dw = j >> 1
            A(f"v_perm_b32 {vr(op)}, {vr(vb+4+dw)}, {vr(vb+dw)}, {sel}")
            A(f"v_perm_b32 {vr(op+1)}, {vr(vb+12+dw)}, {vr(vb+8+dw)}, {sel}")
            A("s_nop 1")
            A(f"v_mfma_f32_16x16x16_bf16 {vr(O+4*j,4)}, {vr(op,2)}, {vr(P,2)}, {vr(O+4*j,4)}")

    A("s_cmp_lg_u32 s64, 0"); A("s_cbranch_scc1 L_Astream")
    if opt.get("noctl", 0):
        lds_signal(F_C1, 8, 7)
        lds_wait(F_W, 4, 8, 7, sleep=0)
        A("s_branch L_ctld")
    A("s_waitcnt vmcnt(0)")
    A("s_mov_b64 exec, 1")
    A("buffer_atomic_add v20, v21, s[52:55], s73 offen sc0")
    A(f"ds_add_u32 v21, v22 offset:{L_FLAG+F_C1}")
    A("s_mov_b64 exec, -1")
    stamp(5)
    A("s_lshr_b32 s60, s56, 2"); A("s_lshl_b32 s60, s60, 14")
    A("s_and_b32 s61, s56, 3"); A("s_lshl_b32 s61, s61, 12"); A("s_add_u32 s76, s60, s61")
    for k in range(1, 4):
        A(f"s_add_u32 s{76+k}, s76, {P1_KQ*k}")
    A("v_lshlrev_b32 v10, 4, v0")
    A("v_lshrrev_b32 v11, 5, v0"); A(f"v_mul_u32_u24 v11, {Q_PITCH}, v11"); A("v_and_b32 v12, 31, v0"); A("v_lshl_add_u32 v11, v12, 3, v11")
    A("v_lshrrev_b32 v19, 3, v0"); A("v_and_b32 v18, 7, v0"); A("v_lshl_add_u32 v19, v19, 5, v18")
    A(f"v_lshlrev_b32 v19, {MB_SH}, v19")
    A(f"s_lshl_b32 s75, s73, {MB_SH-3}"); A(f"s_add_u32 s75, s75, {WS_TK}")
    for i in range(4):
        A(f"v_mov_b32 v{12+i}, 0")
    A("s_mov_b32 s61, 0")
    A("s_waitcnt vmcnt(0)")
    A("v_readfirstlane_b32 s60, v20")
    A("s_cmp_lg_u32 s60, 63"); A("s_cbranch_scc1 L_mbp")
    A("buffer_store_dword v22, v19, s[36:39], s75 offen sc1")
    A("s_branch L_mbd")
    A.label("L_mbp")
    A("s_mov_b64 exec, 1")
    A.label("L_mbl")
    NP = opt.get("np", 4)
    for i in range(NP):
        A(f"buffer_load_dword v{12+i}, v21, s[36:39], s72 offen sc1")
        A(f"s_sleep {opt.get('mbsleep', 4)}")
        A(f"s_waitcnt vmcnt({NP-1})")
        A(f"v_cmp_eq_u32 vcc, 1, v{12+(i+1)%NP}")
        A("s_nop 0")
        A("s_cbranch_vccnz L_mbd")
    A("s_add_u32 s61, s61, 1")
    A("s_cmp_lt_u32 s61, s62"); A("s_cbranch_scc1 L_mbl")
    A.label("L_mbd")
    A("s_mov_b64 exec, -1")
    stamp(6)
    def qloads():
        for hp in range(4):
            for k in range(4):
                A(f"buffer_load_dwordx4 {vr(BUF+16*hp+4*k,4)}, v10, s[36:39], s{76+k} offen offset:{1024*hp} sc1")
    poll_loop(qloads, list(range(BUF, BUF + 64)), 8)
    for hp in range(4):
        r = BUF + 16 * hp
        for e in range(4):
            A(f"v_add_f32 {vr(r+e)}, {vr(r+e)}, {vr(r+4+e)}")
            A(f"v_add_f32 {vr(r+8+e)}, {vr(r+8+e)}, {vr(r+12+e)}")
        for e in range(4):
            A(f"v_add_f32 {vr(r+e)}, {vr(r+e)}, {vr(r+8+e)}")
        A(f"v_cvt_pk_bf16_f32 {vr(r)}, {vr(r)}, {vr(r+1)}"); A(f"v_cvt_pk_bf16_f32 {vr(r+1)}, {vr(r+2)}, {vr(r+3)}")
        A(f"ds_write_b64 v11, {vr(r,2)} offset:{L_Q+2*Q_PITCH*hp}")
    A.label("L_ctld")
    lds_signal(F_Q, 8, 7)
    tk_req()
    A("s_setprio 0")
    stamp(7)
    for b in range(NB):
        a_issue(b)
    A("s_mov_b32 s67, 0")
    A("s_branch L_Acommon")
    A.label("L_Astream")
    lds_wait(F_W, 4, 8, 7, sleep=0)
    tk_req()
    A("s_setprio 0")
    stamp(5)
    for b in range(NB + NX):
        a_issue(b, True)
        if b == 1:
            A("s_waitcnt vmcnt(16)")
            A("s_mov_b64 exec, 1")
            A(f"ds_add_rtn_u32 v19, v21, v22 offset:{L_FLAG+F_CL}")
            A("s_waitcnt lgkmcnt(0)")
            A("v_readfirstlane_b32 s74, v19")
            A("s_cmp_lg_u32 s74, 2"); A("s_cbranch_scc1 L_noarr")
            lds_wait(F_C1, 1, 8, 7, sleep=0)
            A("buffer_atomic_add v20, v21, s[52:55], s73 offen offset:4 sc0")
            A.label("L_noarr")
            A("s_mov_b64 exec, -1")
    A("s_cmp_lg_u32 s74, 2"); A("s_cbranch_scc1 L_nobc")
    A(f"s_waitcnt vmcnt({8*(NB+NX-2)})")
    A("v_readfirstlane_b32 s60, v20")
    A("s_cmp_lg_u32 s60, 63"); A("s_cbranch_scc1 L_nobc")
    A("v_mov_b32 v18, 1")
    A("s_mov_b64 exec, 1")
    A("buffer_atomic_add v18, v21, s[52:55], 0 offen offset:32 sc0")
    A("s_mov_b64 exec, -1")
    A("s_waitcnt vmcnt(0)")
    A("v_readfirstlane_b32 s60, v18")
    A("s_cmp_lg_u32 s60, 3"); A("s_cbranch_scc1 L_nobc")
    A(f"v_lshlrev_b32 v19, {MB_SH}, v0")
    for i in range(4):
        A(f"s_mov_b32 s60, {WS_TK + (64 << MB_SH) * i}")
        A("buffer_store_dword v22, v19, s[36:39], s60 offen offset:4 sc1")
    A.label("L_nobc")
    A("s_mov_b32 s67, 1")
    A.label("L_Acommon")
    for i in range(32):
        A(f"v_mov_b32 {vr(O+i)}, 0")
    A(f"v_mov_b32 {vr(vM)}, 0xff800000")
    A(f"v_mov_b32 {vr(vL)}, 0")
    stamp(1)
    if not opt.get("noq", 0):
        lds_wait(F_Q, 1, 8, 7, sleep=2)
    stamp(2)
    A("v_and_b32 v7, 7, v0"); A(f"v_mul_u32_u24 v7, {Q_PITCH}, v7"); A("v_lshl_add_u32 v7, v6, 4, v7")
    for j in range(4):
        A(f"ds_read_b128 {vr(Q+4*j,4)}, v7 offset:{L_Q+64*j}")
    A(f"s_mov_b32 s69, 0x{LOG2E:x}")
    A(f"s_mov_b32 s70, 0x{SCALE:x}")
    A("s_waitcnt lgkmcnt(0)")
    A.label("L_Aloop")
    for b in range(NB):
        A(f"s_cmp_ge_u32 s{TK+b}, 64")
        A("s_cbranch_scc1 L_Adone")
        a_proc(b)
        a_issue(b)
    A("s_cmp_eq_u32 s67, 0")
    A("s_cbranch_scc1 L_Aloop")
    A("s_mov_b32 s67, 0")
    for b in range(NB, NB + NX):
        a_proc(b)
    A("s_branch L_Aloop")
    A.label("L_Adone")
    A("s_setprio 3")
    stamp(3)
    xrow_reduce("v_add_f32", [vL], [T[0], T[1]])
    A("v_and_b32 v5, 15, v0"); A("v_lshrrev_b32 v6, 4, v0")
    A(f"v_mul_u32_u24 v7, {O_PITCH}, v5"); A("v_lshl_add_u32 v7, v6, 7, v7")
    A(f"s_mul_i32 s60, s64, {O_SLAB}")
    A("v_add_u32 v7, s60, v7")
    A("s_lshl_b32 s60, s64, 3")
    A("v_lshlrev_b32 v8, 5, v5"); A("v_add_u32 v8, s60, v8")
    A("v_cmp_gt_u32 vcc, 8, v5")
    A("s_and_b64 exec, exec, vcc")
    for j in range(8):
        A(f"ds_write_b128 v7, {vr(O+4*j,4)} offset:{L_O+16*j}")
    A(f"v_mov_b32 {vr(S)}, {vr(vM)}"); A(f"v_mov_b32 {vr(S+1)}, {vr(vL)}")
    A(f"ds_write_b64 v8, {vr(S,2)} offset:{L_ST}")
    A("s_mov_b64 exec, -1")
    A("v_mov_b32 v7, 0")
    lds_signal(F_O, 8, 7)
    A("v_lshrrev_b32 v5, 5, v0"); A("s_lshl_b32 s60, s64, 1"); A("v_add_u32 v5, s60, v5")
    A("v_and_b32 v6, 31, v0")
    A(f"v_mul_u32_u24 v20, {O_PITCH}, v5"); A("v_lshl_add_u32 v20, v6, 4, v20")
    A("v_lshlrev_b32 v21, 5, v5")
    A("v_lshlrev_b32 v23, 8, v5")
    A("v_lshlrev_b32 v22, 9, v5"); A("v_lshl_add_u32 v22, v6, 4, v22")
    A("s_lshl_b32 s71, s2, 12"); A(f"s_add_u32 s71, s71, {WS_OP}")
    A("s_lshl_b32 s72, s56, 11"); A("s_lshl_b32 s61, s57, 3"); A("s_add_u32 s72, s72, s61"); A(f"s_add_u32 s72, s72, {WS_ST}")
    lds_wait(F_O, 4, 8, 7, sleep=0)
    for i in range(2):
        A(f"ds_read_b128 {vr(Q+4*i,4)}, v21 offset:{L_ST+16*i}")
    for a in range(4):
        A(f"ds_read_b128 {vr(BUF+4*a,4)}, v20 offset:{L_O+O_SLAB*a}")
    A("s_waitcnt lgkmcnt(4)")
    A(f"v_max3_f32 v10, {vr(Q)}, {vr(Q+2)}, {vr(Q+4)}")
    A(f"v_max_f32 v10, v10, {vr(Q+6)}")
    for a in range(4):
        A(f"v_sub_f32 {vr(Q+2*a)}, {vr(Q+2*a)}, v10")
    for a in range(4):
        A(f"v_mul_f32 {vr(Q+2*a)}, s69, {vr(Q+2*a)}")
    for a in range(4):
        A(f"v_exp_f32 {vr(Q+2*a)}, {vr(Q+2*a)}")
    A("s_nop 0")
    A(f"v_mul_f32 v11, {vr(Q)}, {vr(Q+1)}")
    for a in range(1, 4):
        A(f"v_fmac_f32 v11, {vr(Q+2*a)}, {vr(Q+2*a+1)}")
    A("s_waitcnt lgkmcnt(0)")
    for r in range(4):
        A(f"v_mul_f32 {vr(O+r)}, {vr(Q)}, {vr(BUF+r)}")
    for a in range(1, 4):
        for r in range(4):
            A(f"v_fmac_f32 {vr(O+r)}, {vr(Q+2*a)}, {vr(BUF+4*a+r)}")
    for r in range(4):
        A(f"v_min_u32 {vr(O+r)}, -2, {vr(O+r)}")
    A("v_min_u32 v10, -2, v10"); A("v_min_u32 v11, -2, v11")
    A(f"buffer_store_dwordx4 {vr(O,4)}, v22, s[36:39], s71 offen sc1")
    A("v_cmp_eq_u32 vcc, 0, v6")
    A("s_and_b64 exec, exec, vcc")
    A("buffer_store_dwordx2 v[10:11], v23, s[36:39], s72 offen sc1")
    A("s_mov_b64 exec, -1")
    A.label("L_Aexit")
    stamp(4)
    stamp_flush()
    A("s_endpgm")

    A.label("L_G")
    A.c("---------------- GEMV / control waves")
    X, XS, XOP, WQ, WG, WU, TMP = 10, 26, 30, 40, 72, 104, 136
    srd(32, "s4", "s5", 16384)
    A("v_lshlrev_b32 v1, 5, v0")
    A("s_lshl_b32 s60, s3, 12")
    for r in range(2):
        for hlf in range(2):
            A(f"buffer_load_dwordx4 {vr(X+8*r+4*hlf,4)}, v1, s[32:35], s60 offen offset:{2048*r+16*hlf}")
    A("v_lshlrev_b32 v2, 3, v0")
    A("s_lshl_b32 s61, s64, 9"); A("s_add_u32 s60, s60, s61")
    for r in range(2):
        A(f"buffer_load_dwordx2 {vr(XS+2*r,2)}, v2, s[32:35], s60 offen offset:{2048*r}")
    srd(28, "s10", "s11", 0x800000)
    A("s_lshl_b32 s67, s64, 2"); A("s_add_u32 s67, s67, s3"); A("s_lshl_b32 s67, s67, 6")
    A("s_lshl_b32 s61, s65, 7")
    A("s_lshl_b32 s68, s67, 13"); A("s_add_u32 s68, s68, s61")
    A("v_lshlrev_b32 v3, 16, v6"); A("v_lshl_add_u32 v3, v5, 3, v3")

    def w_issue(base, v, sd, pitch):
        for kb in range(2):
            for i in range(8):
                A(f"buffer_load_dwordx2 {vr(base+16*kb+2*i,2)}, {v}, s[{sd}:{sd+3}], s68 offen nt")
                if not (kb == 1 and i == 7):
                    A(f"s_add_u32 s68, s68, {pitch*(25 if i == 7 else 1)}")
    w_issue(WQ, "v3", 28, 8192)
    touch = 0
    lds_signal(F_W, 8, 7)
    stamp(1)
    SM = [TMP, TMP + 1]; SQ = [TMP + 2, TMP + 3]; TT = list(range(TMP + 4, TMP + 12))
    A("s_mov_b32 s60, 0x3f803f80")
    for i in range(4):
        A(f"v_mov_b32 {vr(TMP+i)}, 0")
    A(f"s_waitcnt vmcnt({18+touch})")
    for i in range(8):
        for r in range(2):
            A(f"v_dot2c_f32_bf16 {vr(SM[r])}, s60, {vr(X+8*r+i)}")
            A(f"v_dot2c_f32_bf16 {vr(SQ[r])}, {vr(X+8*r+i)}, {vr(X+8*r+i)}")
    A("s_nop 2")
    row_reduce_add(SM + SQ)
    xrow_reduce("v_add_f32", SM + SQ, TT)
    for r in range(2):
        A(f"v_mul_f32 {vr(SM[r])}, 0x3a800000, {vr(SM[r])}")
        A(f"v_mul_f32 {vr(SQ[r])}, 0x3a800000, {vr(SQ[r])}")
    for r in range(2):
        A(f"v_fma_f32 {vr(SQ[r])}, -{vr(SM[r])}, {vr(SM[r])}, {vr(SQ[r])}")
        A(f"v_max_f32 {vr(SQ[r])}, 0, {vr(SQ[r])}")
    for r in range(2):
        bf16r(SQ[r], TT[r])
    for r in range(2):
        A(f"v_add_f32 {vr(SQ[r])}, 0x3727c5ac, {vr(SQ[r])}")
    for r in range(2):
        bf16r(SQ[r], TT[r])
    for r in range(2):
        A(f"v_sqrt_f32 {vr(SQ[r])}, {vr(SQ[r])}")
    for r in range(2):
        bf16r(SM[r], TT[2 + r])
    for r in range(2):
        bf16r(SQ[r], TT[r])
    for r in range(2):
        A(f"v_rcp_f32 {vr(SQ[r])}, {vr(SQ[r])}")
    A(f"s_waitcnt vmcnt({16+touch})")
    for r in range(2):
        for i in range(2):
            a, b2, t = TT[0], TT[1], TT[2]
            src = XS + 2 * r + i
            A(f"v_lshlrev_b32 {vr(a)}, 16, {vr(src)}")
            A(f"v_and_b32 {vr(b2)}, 0xffff0000, {vr(src)}")
            A(f"v_sub_f32 {vr(a)}, {vr(a)}, {vr(SM[r])}")
            A(f"v_sub_f32 {vr(b2)}, {vr(b2)}, {vr(SM[r])}")
            A(f"v_cvt_pk_bf16_f32 {vr(t)}, {vr(a)}, {vr(b2)}")
            A(f"v_lshlrev_b32 {vr(a)}, 16, {vr(t)}")
            A(f"v_and_b32 {vr(b2)}, 0xffff0000, {vr(t)}")
            A(f"v_mul_f32 {vr(a)}, {vr(a)}, {vr(SQ[r])}")
            A(f"v_mul_f32 {vr(b2)}, {vr(b2)}, {vr(SQ[r])}")
            A(f"v_cvt_pk_bf16_f32 {vr(src)}, {vr(a)}, {vr(b2)}")
    A(f"s_mul_i32 s60, s3, {2*XN_PITCH}")
    A("v_add_u32 v2, s60, v2")
    for r in range(2):
        A(f"ds_write_b64 v2, {vr(XS+2*r,2)} offset:{L_XN+XN_PITCH*r}")
    lds_signal(F_XN, 8, 7)
    stamp(2)
    A("v_and_b32 v3, 7, v0"); A(f"v_mul_u32_u24 v3, {XN_PITCH}, v3"); A("v_lshl_add_u32 v3, v6, 4, v3")
    A("s_lshl_b32 s60, s3, 7"); A("v_add_u32 v3, s60, v3")
    A(f"v_mul_u32_u24 v2, {P1_PITCH}, v5"); A("v_lshl_add_u32 v2, v6, 4, v2")
    A(f"s_mul_i32 s60, s3, {P1_WAVE}"); A("v_add_u32 v2, s60, v2")
    A("v_cmp_gt_u32 s[74:75], 8, v5")
    A("v_and_b32 v4, 1, v6"); A("s_lshl_b32 s60, s3, 1"); A("v_add_u32 v4, s60, v4")
    A(f"v_mul_u32_u24 v1, {P1_PITCH}, v4"); A("v_lshl_add_u32 v1, v5, 2, v1")
    A("v_lshrrev_b32 v8, 5, v0")
    A(f"v_mul_u32_u24 v38, {P1_UNIT}, v8"); A("v_add_u32 v1, v1, v38")
    A(f"v_add_u32 v1, {L_P1}, v1")
    A("v_lshlrev_b32 v4, 14, v4"); A("v_lshl_add_u32 v4, v5, 4, v4"); A("v_lshl_add_u32 v4, v8, 19, v4")
    lds_wait(F_XN, 4, 8, 7, sleep=0)
    for kb in range(2):
        A(f"ds_read_b128 {vr(XOP+4*kb,4)}, v3 offset:{L_XN+64*kb}")

    def unit_mfma(wbase, acc, opt_, waits):
        for kb in range(2):
            A(f"s_waitcnt vmcnt({waits[kb]}) lgkmcnt(0)")
            wb = wbase + 16 * kb
            for j in range(4):
                op = opt_ + 4 * (j & 1)
                sel = "s58" if (j & 1) == 0 else "s59"
                dw = j >> 1
                for t in range(4):
                    A(f"v_perm_b32 {vr(op+t)}, {vr(wb+4*t+2+dw)}, {vr(wb+4*t+dw)}, {sel}")
                A("s_nop 1")
                c = "0" if kb == 0 else vr(acc + 4 * j, 4)
                A(f"v_mfma_f32_16x16x32_bf16 {vr(acc+4*j,4)}, {vr(op,4)}, {vr(XOP+4*kb,4)}, {c}")

    def unit_write(acc, unit):
        A("s_mov_b64 exec, s[74:75]")
        for j in range(4):
            A(f"ds_write_b128 v2, {vr(acc+4*j,4)} offset:{L_P1+P1_UNIT*unit+64*j}")
        A("s_mov_b64 exec, -1")

    def unit_reduce(unit0, R, mask, soff, vpub="v4"):
        A(f"s_mov_b64 exec, {mask}")
        for w in range(4):
            off = (P1_UNIT * unit0 + P1_WAVE * w) // 4
            A(f"v_add_u32 v8, {P1_UNIT*unit0 + P1_WAVE*w}, v1")
            A(f"ds_read2_b32 {vr(R+4*w,2)}, v8 offset0:0 offset1:16")
            A(f"ds_read2_b32 {vr(R+4*w+2,2)}, v8 offset0:32 offset1:48")
        A("s_waitcnt lgkmcnt(0)")
        for e in range(4):
            A(f"v_add_f32 {vr(R+e)}, {vr(R+e)}, {vr(R+4+e)}")
            A(f"v_add_f32 {vr(R+8+e)}, {vr(R+8+e)}, {vr(R+12+e)}")
        for e in range(4):
            A(f"v_add_f32 {vr(R+e)}, {vr(R+e)}, {vr(R+8+e)}")
        for e in range(4):
            A(f"v_min_u32 {vr(R+e)}, -2, {vr(R+e)}")
        A(f"buffer_store_dwordx4 {vr(R,4)}, {vpub}, s[36:39], {soff} offen sc1")
        A("s_mov_b64 exec, -1")

    srd(52, "s24", "s25", 256)
    A(f"s_lshl_b32 s72, s2, {MB_SH}"); A(f"s_add_u32 s72, s72, {WS_TK}")
    unit_mfma(WQ, X, TMP, [8+touch, touch])
    stamp(3)
    A("s_nop 7")
    unit_write(X, 0)
    lds_signal(F_P1, 8, 7)
    lds_wait(F_P1, 4, 8, 7, sleep=0)
    lds_wait(F_C1, 1, 8, 7, sleep=0)
    if not opt.get("noqst", 0):
        unit_reduce(0, WQ, "0xffffffff", "s66")
    stamp(4)
    def mb_wait(imm, sleep):
        l = A.new("Lmb"); d = A.new("Lmbd")
        A("s_mov_b32 s61, 0")
        A("s_mov_b64 exec, 1")
        A.label(l)
        A(f"buffer_load_dword v28, v7, s[36:39], s72 offen offset:{imm} sc1")
        A("s_add_u32 s61, s61, 1")
        A("s_waitcnt vmcnt(0)")
        A("v_cmp_ne_u32 vcc, 1, v28")
        A(f"s_cmp_ge_u32 s61, s62"); A(f"s_cbranch_scc1 {d}")
        A(f"s_cbranch_vccz {d}")
        if sleep:
            A(f"s_sleep {sleep}")
        A(f"s_branch {l}")
        A.label(d)
        A("s_mov_b64 exec, -1")
    WO, WD, WOP, OD, STT, ACC2, GU = 200, 168, 104, 72, 32, 136, 104
    def tail_weights():
        srd(40, "s12", "s13", 0x800000)
        srd(44, "s20", "s21", 0x700000)
        for i in range(32):
            A(f"v_mov_b32 {vr(WD+i)}, 0")
        A("v_lshlrev_b32 v232, 14, v6"); A("v_lshl_add_u32 v232, v5, 4, v232")
        A("s_mul_i32 s60, s56, 112"); A("s_lshl_b32 s61, s3, 5"); A("s_add_u32 s71, s60, s61")
        A("s_lshl_b32 s60, s71, 11"); A("s_lshl_b32 s61, s57, 8"); A("s_add_u32 s60, s60, s61")
        A("s_cmp_eq_u32 s3, 3")
        A("s_cselect_b32 s77, 0, -1"); A("s_mov_b32 s76, -1")
        A("s_mov_b64 exec, s[76:77]")
        for i in range(8):
            A(f"buffer_load_dwordx4 {vr(WD+4*i,4)}, v232, s[44:47], s60 offen offset:{2048*(i&1)} nt")
            if i & 1:
                A("s_add_u32 s60, s60, 4096")
        A("s_mov_b64 exec, -1")
        A("v_lshlrev_b32 v233, 12, v6"); A("v_lshl_add_u32 v233, v5, 4, v233")
        A("s_lshl_b32 s60, s56, 2"); A("s_add_u32 s60, s60, s3"); A("s_lshl_b32 s60, s60, 16"); A("s_add_u32 s60, s60, s61")
        for i4 in range(4):
            for hi in range(2):
                i = i4 + 4 * hi
                A(f"buffer_load_dwordx4 {vr(WO+4*i,4)}, v233, s[40:43], s60 offen offset:{2048*hi} nt")
            A("s_add_u32 s60, s60, 16384")
        A("s_and_b32 s78, s56, 7"); A("s_lshr_b32 s79, s56, 3")
        A("s_lshl_b32 s80, s78, 11"); A("s_lshl_b32 s60, s57, 8"); A("s_add_u32 s80, s80, s60"); A("s_lshl_b32 s60, s79, 6"); A("s_add_u32 s80, s80, s60")
        A("v_lshlrev_b32 v234, 1, v0")
        A("buffer_load_ushort v38, v234, s[32:35], s80 offen")
    wlate = opt.get("wlate", 0)
    ex = 0 if wlate else 17
    srd(40, "s16", "s17", 0x700000)
    srd(44, "s18", "s19", 0x700000)
    A("v_mul_u32_u24 v3, 57344, v6"); A("v_lshl_add_u32 v3, v5, 3, v3")
    A("s_lshl_b32 s61, s89, 7"); A("s_mul_i32 s69, s67, 7168"); A("s_add_u32 s69, s69, s61")
    A("s_cmp_lt_u32 s89, 56"); A(f"s_cselect_b32 s69, s69, {OOB}")
    A("s_mov_b32 s68, s69")
    w_issue(WG, "v3", 40, 7168)
    A("s_mov_b32 s68, s69")
    w_issue(WU, "v3", 44, 7168)
    if not wlate:
        tail_weights()
    stamp(6)
    unit_mfma(WG, TMP, X, [24+ex, 16+ex])
    unit_mfma(WU, TMP + 16, X, [8+ex, ex])
    stamp(15)
    if opt.get("gexit", 0) == 1:
        A("s_waitcnt vmcnt(0)")
        A("s_branch L_Gexit")
    A("s_nop 7")
    unit_write(TMP, 1)
    unit_write(TMP + 16, 2)
    lds_signal(F_P2, 8, 7)
    A("v_lshrrev_b32 v4, 2, v5"); A("v_lshlrev_b32 v4, 12, v4"); A("v_and_b32 v3, 3, v5"); A("v_lshl_add_u32 v4, v3, 4, v4")
    A("v_lshrrev_b32 v3, 5, v0"); A("v_lshl_add_u32 v4, v3, 9, v4"); A("v_and_b32 v3, 1, v6"); A("v_lshl_add_u32 v4, v3, 6, v4")
    A("s_lshl_b32 s68, s3, 7"); A("s_add_u32 s68, s68, s93")
    lds_wait(F_P2, 4, 8, 7, sleep=opt.get("p2sleep", 2))
    lds_wait(F_CL, 3, 8, 7, sleep=2)
    unit_reduce(1, WQ + 16, "-1", "s68")
    stamp(5)
    if opt.get("gexit", 0) == 2:
        A("s_waitcnt vmcnt(0)")
        A("s_branch L_Gexit")
    if wlate:
        tail_weights()
    ROR = "row_ror:8 row_mask:0xf bank_mask:0xf"
    HOPR = 34
    lds_wait(F_TK, opt.get("guthr", 34), 8, 7, sleep=8)
    mb_wait(4, 8)
    A("s_cmp_lg_u32 s3, 0"); A("s_cbranch_scc1 L_nored")
    A("s_cmp_ge_u32 s89, 56"); A("s_cbranch_scc1 L_nored")
    A("v_lshlrev_b32 v1, 4, v0")
    A("s_lshl_b32 s81, s95, 12"); A(f"s_add_u32 s81, s81, {WS_GU}")
    def guloads():
        for k in range(4):
            A(f"buffer_load_dwordx4 {vr(GU+4*k,4)}, v1, s[36:39], s81 offen offset:{1024*k} sc1")
    poll_loop(guloads, list(range(GU, GU + 16)), 8, sleep=16)
    for e in range(4):
        A(f"v_add_f32 {vr(GU+e)}, {vr(GU+e)}, {vr(GU+4+e)}")
        A(f"v_add_f32 {vr(GU+8+e)}, {vr(GU+8+e)}, {vr(GU+12+e)}")
    for e in range(4):
        A(f"v_add_f32 {vr(GU+e)}, {vr(GU+e)}, {vr(GU+8+e)}")
    g0, g1, u0, u1, z0, z1 = 18, 19, 20, 21, 22, 23
    A(f"v_cvt_pk_bf16_f32 {vr(z0)}, {vr(GU)}, {vr(GU+1)}")
    A(f"v_cvt_pk_bf16_f32 {vr(z1)}, {vr(GU+2)}, {vr(GU+3)}")
    A("s_mov_b32 s60, 0x3d372713")
    A("s_mov_b32 s61, 0xc0135761")
    A(f"v_permlane32_swap_b32 {vr(z0)}, {vr(z1)}")
    A("s_nop 1")
    A(f"v_lshlrev_b32 {vr(g0)}, 16, {vr(z0)}"); A(f"v_and_b32 {vr(g1)}, 0xffff0000, {vr(z0)}")
    A(f"v_lshlrev_b32 {vr(u0)}, 16, {vr(z1)}"); A(f"v_and_b32 {vr(u1)}, 0xffff0000, {vr(z1)}")
    for g, z in ((g0, z0), (g1, z1)):
        A(f"v_mul_f32 {vr(z)}, {vr(g)}, {vr(g)}")
        A(f"v_mul_f32 {vr(z)}, s60, {vr(z)}")
        A(f"v_fma_f32 {vr(z)}, {vr(z)}, {vr(g)}, {vr(g)}")
        A(f"v_mul_f32 {vr(z)}, s61, {vr(z)}")
        A(f"v_exp_f32 {vr(z)}, {vr(z)}")
        A("s_nop 0")
        A(f"v_add_f32 {vr(z)}, 1.0, {vr(z)}")
        A(f"v_rcp_f32 {vr(z)}, {vr(z)}")
        A("s_nop 0")
        A(f"v_mul_f32 {vr(g)}, {vr(g)}, {vr(z)}")
    A(f"v_cvt_pk_bf16_f32 {vr(z0)}, {vr(g0)}, {vr(g1)}")
    A(f"v_lshlrev_b32 {vr(g0)}, 16, {vr(z0)}"); A(f"v_and_b32 {vr(g1)}, 0xffff0000, {vr(z0)}")
    A(f"v_mul_f32 {vr(g0)}, {vr(g0)}, {vr(u0)}"); A(f"v_mul_f32 {vr(g1)}, {vr(g1)}, {vr(u1)}")
    A(f"v_cvt_pk_bf16_f32 {vr(z0)}, {vr(g0)}, {vr(g1)}")
    A("v_and_b32 v1, 31, v0"); A("v_lshlrev_b32 v1, 3, v1"); A("v_lshrrev_b32 v2, 5, v0"); A("v_lshl_add_u32 v1, v2, 2, v1")
    A(f"v_min_u32 {vr(z0)}, -2, {vr(z0)}")
    A("s_lshl_b32 s81, s95, 8"); A(f"s_add_u32 s81, s81, {WS_H}")
    A(f"buffer_store_dword {vr(z0)}, v1, s[36:39], s81 offen sc1")
    stamp(14)
    A.label("L_nored")
    for i in range(4):
        A(f"v_mov_b32 {vr(HOPR+i)}, 0")
    A("v_and_b32 v2, 7, v0"); A("v_lshlrev_b32 v1, 5, v2"); A("v_and_b32 v3, 1, v6"); A("v_lshl_add_u32 v1, v3, 4, v1")
    A("v_lshrrev_b32 v3, 5, v0"); A("v_lshl_add_u32 v1, v3, 8, v1")
    A("s_mul_i32 s81, s56, 7"); A("s_lshl_b32 s60, s3, 1"); A("s_add_u32 s81, s81, s60"); A("s_lshl_b32 s81, s81, 8"); A(f"s_add_u32 s81, s81, {WS_H}")
    lds_wait(F_TK, opt.get("hthr", 52), 8, 7, sleep=8)
    def hloads():
        A(f"buffer_load_dwordx4 {vr(HOPR,4)}, v1, s[36:39], s81 offen sc1")
    poll_loop(hloads, list(range(HOPR, HOPR + 4)), 8, "s[76:77]", sleep=16)
    stamp(7)
    for j in range(8):
        op = 10 + 4 * (j & 1)
        sel = "s58" if (j & 1) == 0 else "s59"
        dw = j >> 1
        for t in range(4):
            A(f"v_perm_b32 {vr(op+t)}, {vr(WD+8*t+4+dw)}, {vr(WD+8*t+dw)}, {sel}")
        A("s_nop 1")
        A(f"v_mfma_f32_16x16x32_bf16 {vr(ACC2+4*j,4)}, {vr(op,4)}, {vr(HOPR,4)}, 0")
    for j in range(8):
        sel = "s58" if (j & 1) == 0 else "s59"
        dw = j >> 1
        for t in range(4):
            A(f"v_perm_b32 {vr(WOP+4*j+t)}, {vr(WO+8*t+4+dw)}, {vr(WO+8*t+dw)}, {sel}")
    A("v_lshrrev_b32 v3, 3, v0")
    A("v_lshlrev_b32 v4, 17, v2"); A("v_lshl_add_u32 v4, v3, 4, v4")
    A("s_lshl_b32 s60, s79, 15"); A("s_lshl_b32 s61, s78, 9"); A("s_add_u32 s60, s60, s61"); A("s_lshl_b32 s61, s3, 7"); A("s_add_u32 s60, s60, s61")
    A(f"s_add_u32 s81, s60, {WS_OP}")
    for s_ in range(1, 8):
        A(f"s_add_u32 s{81+s_}, s81, {4096*s_}")
    A("v_lshlrev_b32 v2, 13, v2"); A("v_lshl_add_u32 v2, v3, 3, v2")
    A("s_lshl_b32 s60, s79, 11"); A("s_lshl_b32 s61, s78, 8"); A("s_add_u32 s60, s60, s61"); A(f"s_add_u32 s70, s60, {WS_ST}")
    A(f"s_mov_b32 s69, 0x{LOG2E:x}")
    stamp(8)
    if opt.get("gexit", 0) == 4:
        A("s_branch L_Gexit")
    lds_wait(F_O, 4, 8, 7, sleep=4)
    stamp(9)
    if opt.get("gexit", 0) == 5:
        A("s_branch L_Gexit")
    def h1loads():
        A(f"buffer_load_dwordx2 {vr(STT,2)}, v2, s[36:39], s70 offen sc1")
        for s_ in range(8):
            A(f"buffer_load_dwordx4 {vr(OD+4*s_,4)}, v4, s[36:39], s{81+s_} offen sc1")
    A("s_cmp_lg_u32 s3, 0"); A("s_cbranch_scc1 L_h1w")
    A("s_mov_b32 s61, 0")
    A("s_branch L_h1f")
    A.label("L_h1l")
    A(f"s_sleep {opt.get('h1sleep', 4)}")
    A.label("L_h1f")
    A(f"buffer_load_dword {vr(STT)}, v2, s[36:39], s70 offen sc1")
    A("s_add_u32 s61, s61, 1")
    A("s_waitcnt vmcnt(0)")
    A(f"v_cmp_eq_u32 vcc, -1, {vr(STT)}")
    A("s_cmp_ge_u32 s61, s62"); A("s_cbranch_scc1 L_h1d")
    A("s_and_b64 exec, exec, vcc")
    A("s_bcnt1_i32_b64 s60, exec")
    A(f"s_cmp_gt_u32 s60, {opt.get('h1thr', 4)}"); A("s_cbranch_scc1 L_h1l")
    A.label("L_h1d")
    lds_signal(F_H1, 8, 7)
    A("s_branch L_h1g")
    A.label("L_h1w")
    lds_wait(F_H1, 1, 8, 7, sleep=2)
    A.label("L_h1g")
    poll_loop(h1loads, list(range(STT, STT + 2)) + list(range(OD, OD + 32)), 8, sleep=opt.get("h1psl", 0))
    stamp(10)
    W = 24
    A(f"v_max_f32_dpp v10, {vr(STT)}, {vr(STT)} {ROR}")
    xrow_reduce("v_max_f32", [10], [12, 13])
    A(f"v_sub_f32 v10, {vr(STT)}, v10")
    A("v_mul_f32 v10, s69, v10")
    A("v_exp_f32 v10, v10")
    A("s_nop 0")
    A(f"v_mul_f32 v11, v10, {vr(STT+1)}")
    A(f"v_mov_b32 {vr(W)}, v10"); A(f"v_mov_b32 {vr(W+1)}, v10")
    A(f"v_add_f32_dpp v11, v11, v11 {ROR}")
    A(f"v_mov_b32_dpp {vr(W)}, v10 row_ror:8 row_mask:0xf bank_mask:0xc")
    A(f"v_mov_b32_dpp {vr(W+1)}, v10 row_ror:8 row_mask:0xf bank_mask:0x3")
    A("v_mov_b32 v12, v11"); A("v_mov_b32 v13, v11")
    A(f"v_mov_b32 {vr(W+2)}, {vr(W)}"); A(f"v_mov_b32 {vr(W+3)}, {vr(W+1)}")
    A("v_permlane16_swap_b32 v12, v13")
    A("s_nop 0")
    A(f"v_permlane16_swap_b32 {vr(W)}, {vr(W+2)}")
    A(f"v_permlane16_swap_b32 {vr(W+1)}, {vr(W+3)}")
    A("v_add_f32 v11, v12, v13")
    A("s_nop 0")
    for i in range(4):
        A(f"v_mov_b32 {vr(W+4+i)}, {vr(W+i)}")
    A("v_mov_b32 v12, v11"); A("v_mov_b32 v13, v11")
    for i in range(4):
        A(f"v_permlane32_swap_b32 {vr(W+i)}, {vr(W+4+i)}")
    A("v_permlane32_swap_b32 v12, v13")
    A("s_nop 0")
    for r in range(4):
        A(f"v_mul_f32 {vr(16+r)}, {vr(W)}, {vr(OD+r)}")
    A("v_add_f32 v11, v12, v13")
    for s_ in range(1, 8):
        for r in range(4):
            A(f"v_fmac_f32 {vr(16+r)}, {vr(W+s_)}, {vr(OD+4*s_+r)}")
        if s_ == 1:
            A("v_rcp_f32 v11, v11")
    for r in range(4):
        A(f"v_mul_f32 {vr(16+r)}, {vr(16+r)}, v11")
    A("v_cvt_pk_bf16_f32 v20, v16, v17"); A("v_cvt_pk_bf16_f32 v21, v18, v19")
    A("s_nop 1")
    A(f"v_mov_b32_dpp v22, v20 {ROR}"); A(f"v_mov_b32_dpp v23, v21 {ROR}")
    A("s_nop 1")
    for j in range(8):
        A(f"v_mfma_f32_16x16x32_bf16 {vr(ACC2+4*j,4)}, {vr(WOP+4*j,4)}, v[20:23], {vr(ACC2+4*j,4)}")
    A(f"v_mul_u32_u24 v3, {O_PITCH}, v5"); A("v_lshl_add_u32 v3, v6, 7, v3")
    A(f"s_mul_i32 s60, s3, {O_SLAB}"); A(f"s_add_u32 s60, s60, {L_T}"); A("v_add_u32 v3, s60, v3")
    A("v_cmp_gt_u32 vcc, 8, v5"); A("s_and_b64 exec, exec, vcc")
    A("s_nop 4")
    for j in range(8):
        A(f"ds_write_b128 v3, {vr(ACC2+4*j,4)} offset:{16*j}")
    A("s_mov_b64 exec, -1")
    A("v_lshrrev_b32 v3, 5, v0"); A("s_lshl_b32 s60, s3, 1"); A("v_add_u32 v3, s60, v3")
    A("v_and_b32 v4, 31, v0")
    A(f"v_mul_u32_u24 v8, {O_PITCH}, v3"); A("v_lshl_add_u32 v8, v4, 4, v8"); A(f"v_add_u32 v8, {L_T}, v8")
    A("v_lshlrev_b32 v3, 9, v3"); A("v_lshl_add_u32 v3, v4, 4, v3")
    A("s_lshl_b32 s61, s57, 5"); A("s_add_u32 s61, s61, s56"); A("s_lshl_b32 s61, s61, 12"); A(f"s_add_u32 s61, s61, {WS_FP}")
    A("s_waitcnt lgkmcnt(0)")
    A("s_barrier")
    for w in range(4):
        A(f"ds_read_b128 {vr(12+4*w,4)}, v8 offset:{O_SLAB*w}")
    A("s_waitcnt lgkmcnt(0)")
    for r in range(4):
        A(f"v_add_f32 {vr(12+r)}, {vr(12+r)}, {vr(16+r)}")
        A(f"v_add_f32 {vr(20+r)}, {vr(20+r)}, {vr(24+r)}")
    for r in range(4):
        A(f"v_add_f32 {vr(12+r)}, {vr(12+r)}, {vr(20+r)}")
    for r in range(4):
        A(f"v_min_u32 {vr(12+r)}, -2, {vr(12+r)}")
    A("buffer_store_dwordx4 v[12:15], v3, s[36:39], s61 offen sc1")
    stamp(11)
    A("s_cmp_lg_u32 s3, 0"); A("s_cbranch_scc1 L_Gexit")
    A("v_lshrrev_b32 v2, 3, v0"); A("v_and_b32 v3, 7, v0")
    A("v_lshlrev_b32 v4, 14, v2"); A("v_lshl_add_u32 v4, v3, 4, v4")
    A("s_lshl_b32 s60, s57, 17"); A("s_lshl_b32 s61, s78, 9"); A("s_add_u32 s60, s60, s61"); A("s_lshl_b32 s61, s79, 7"); A("s_add_u32 s60, s60, s61")
    A(f"s_add_u32 s81, s60, {WS_FP}")
    for s_ in range(1, 4):
        A(f"s_add_u32 s{81+s_}, s81, {4096*s_}")
    srd(48, "s22", "s23", 16384)
    def h2loads():
        for t in range(4):
            A(f"buffer_load_dwordx4 {vr(40+4*t,4)}, v4, s[36:39], s{81+t} offen sc1")
    poll_loop(h2loads, list(range(40, 56)), 8)
    stamp(12)
    for r in range(4):
        A(f"v_add_f32 {vr(40+r)}, {vr(40+r)}, {vr(44+r)}")
        A(f"v_add_f32 {vr(48+r)}, {vr(48+r)}, {vr(52+r)}")
    for r in range(4):
        A(f"v_add_f32 {vr(40+r)}, {vr(40+r)}, {vr(48+r)}")
    A("s_nop 1")
    for r in range(4):
        A(f"v_add_f32_dpp {vr(40+r)}, {vr(40+r)}, {vr(40+r)} {ROR}")
    xrow_reduce("v_add_f32", [40, 41, 42, 43], list(range(44, 52)))
    for r in range(1, 4):
        A(f"v_cmp_eq_u32 vcc, {r}, v2")
        A("s_nop 1")
        A(f"v_cndmask_b32 v40, v40, {vr(40+r)}, vcc")
    A("v_lshlrev_b32 v38, 16, v38")
    A("v_add_f32 v40, v40, v38")
    A("v_cvt_pk_bf16_f32 v40, v40, v40")
    A("v_lshlrev_b32 v4, 1, v0")
    A("s_mov_b64 exec, 0xffffffff")
    A("buffer_store_short v40, v4, s[48:51], s80 offen")
    A("s_mov_b64 exec, -1")
    if opt.get("pad", 0):
        A.label("L_padl")
        A("s_memrealtime s[90:91]")
        A("s_waitcnt lgkmcnt(0)")
        A("s_sub_u32 s90, s90, s94")
        A(f"s_cmp_lt_u32 s90, {opt['pad']}")
        A("s_cbranch_scc1 L_padl")
    A.label("L_Gexit")
    stamp(13)
    stamp_flush("G")
    A.label("L_end")
    A("s_endpgm")

    Ft = ['.section .rodata,"a"', ".p2align 6", f".amdhsa_kernel {NAME}",
          "  .amdhsa_next_free_vgpr 256", "  .amdhsa_next_free_sgpr 96", "  .amdhsa_accum_offset 256",
          "  .amdhsa_group_segment_fixed_size 0", "  .amdhsa_kernarg_size 96", "  .amdhsa_user_sgpr_count 2",
          "  .amdhsa_user_sgpr_kernarg_segment_ptr 1", "  .amdhsa_system_sgpr_workgroup_id_x 1", ".end_amdhsa_kernel"]
    return "\n".join(H + A.L + Ft) + "\n"


if __name__ == "__main__":
    out = sys.argv[1] if len(sys.argv) > 1 else "k.s"
    opt = {}
    for a in sys.argv[2:]:
        k, v = a.split("=")
        opt[k] = int(v)
    open(out, "w").write(gen(opt))
```
